```python
import torch

def _softmax(x, axis=-1):
    return torch.softmax(x, dim=axis)
def _gelu(x):
    return torch.nn.functional.gelu(x, approximate="tanh")
def _silu(x):
    return torch.nn.functional.silu(x)
def _sigmoid(x):
    return torch.sigmoid(x)
def _layernorm(x, axis=-1, eps=1e-5):
    m = x.mean(dim=axis, keepdim=True)
    v = x.var(dim=axis, keepdim=True, unbiased=False)
    return (x - m) / torch.sqrt(v + eps)
def _scatter_add(tgt, idx, src, axis=0):
    return tgt.clone().index_add_(axis, idx, src)
def _segment_sum(src, seg, n):
    out = torch.zeros((n,) + src.shape[1:], dtype=src.dtype)
    return out.index_add_(0, seg, src)
def _pad(x, pw):
    flat = tuple(v for pair in reversed(pw) for v in pair)
    return torch.nn.functional.pad(x, flat)

kernel_name = 'concat_heads__spectral_fnet__sliding_block__prompt'

def setup_inputs():

    _w = (lambda a: (lambda t: t.to(torch.bfloat16) if t.is_floating_point() else t)(torch.as_tensor(a)))
    def _A_setup():
        B, S, D = 1, 2048, 640
        ns = torch.arange(S)[:, None] * torch.arange(S)[None, :]
        nd = torch.arange(D)[:, None] * torch.arange(D)[None, :]
        Ws_re = torch.cos(-2.0 * torch.pi * ns / S).to(float)
        Ws_im = torch.sin(-2.0 * torch.pi * ns / S).to(float)
        Wd_re = torch.cos(-2.0 * torch.pi * nd / D).to(float)
        Wd_im = torch.sin(-2.0 * torch.pi * nd / D).to(float)
        return {
            "x": _w((lambda *s: torch.randn(*s, dtype=torch.bfloat16) * 0.05)(B, S, D)),
            "dft_seq_re": _w(Ws_re),
            "dft_seq_im": _w(Ws_im),
            "dft_hid_re": _w(Wd_re),
            "dft_hid_im": _w(Wd_im),
        }
    _A_in = _A_setup()

    def _B_setup():
        B, S, D = 1, 2048, 640
        return {
            "x": _w((lambda *s: torch.randn(*s, dtype=torch.bfloat16) * 0.2)(B, S, D)),
            "wqkv": _w((lambda *s: torch.randn(*s, dtype=torch.bfloat16) * 0.8)(D, 3 * D)),
            "wo": _w((lambda *s: torch.randn(*s, dtype=torch.bfloat16) * 0.2)(D, D)),
        }
    _B_in = _B_setup()

    return {
        "A_x": _A_in["x"],
        "A_dft_seq_re": _A_in["dft_seq_re"],
        "A_dft_seq_im": _A_in["dft_seq_im"],
        "A_dft_hid_re": _A_in["dft_hid_re"],
        "A_dft_hid_im": _A_in["dft_hid_im"],
        "B_x": _B_in["x"],
        "B_wqkv": _B_in["wqkv"],
        "B_wo": _B_in["wo"],
    }

def reference(A_x, A_dft_seq_re, A_dft_seq_im, A_dft_hid_re, A_dft_hid_im, B_x, B_wqkv, B_wo):
    def _A_ref(x, dft_seq_re, dft_seq_im, dft_hid_re, dft_hid_im):
        a = torch.einsum("bsd,ed->bse", x, dft_hid_re)
        b = torch.einsum("bsd,ed->bse", x, dft_hid_im)
        y = torch.einsum("ts,bse->bte", dft_seq_re, a) - torch.einsum("ts,bse->bte", dft_seq_im, b)
        return y

    def _B_ref(x, wqkv, wo):
        B, S, D = x.shape
        H = 32; Dh = D // H; W = 256
        qkv = (lambda x, *d: x.permute(*d))((x @ wqkv).reshape(B, S, 3, H, Dh), 2, 0, 3, 1, 4)
        q, k, v = qkv[0], qkv[1], qkv[2]
        scores = torch.einsum("bhqd,bhkd->bhqk", q, k) * (Dh ** -0.5)
        idx = torch.arange(S)
        mask = (idx[:, None] - idx[None, :] >= 0) & (idx[:, None] - idx[None, :] < W)
        scores = torch.where(mask[None, None], scores, -1e9)
        p = _softmax(scores, axis=-1)
        o = torch.einsum("bhqk,bhkd->bhqd", p, v)
        return (lambda x, *d: x.permute(*d))(o, 0, 2, 1, 3).reshape(B, S, D) @ wo

    a = _A_ref(A_x, A_dft_seq_re, A_dft_seq_im, A_dft_hid_re, A_dft_hid_im)
    b = _B_ref(B_x, B_wqkv, B_wo)
    return torch.concatenate([a, b], axis=-1)
```

```python
import re

def regs_of(tok):
    tok = tok.strip()
    neg = tok.startswith('-')
    if neg: tok = tok[1:]
    m = re.fullmatch(r'abs\((.*)\)', tok)
    if m: tok = m.group(1)
    m = re.fullmatch(r'\|(.*)\|', tok)
    if m: tok = m.group(1)
    m = re.fullmatch(r'([vsa])(\d+)', tok)
    if m: return {(m.group(1), int(m.group(2)))}
    m = re.fullmatch(r'([vsa])\[(\d+):(\d+)\]', tok)
    if m: return {(m.group(1), i) for i in range(int(m.group(2)), int(m.group(3))+1)}
    if tok in ('vcc','vcc_lo','vcc_hi'): return {('vcc',0)}
    if tok in ('exec','exec_lo','exec_hi'): return {('exec',0)}
    if tok == 'm0': return {('m0',0)}
    return set()

TRANS = ('v_exp_','v_log_','v_rcp_','v_rsq_','v_sqrt_','v_sin_','v_cos_')

class Ins:
    def __init__(self, text):
        self.text = text
        t = text.split(';')[0].strip()
        self.is_label = t.endswith(':')
        self.is_dir = t.startswith('.') and not self.is_label
        self.op = ''; self.dst=set(); self.src=set(); self.states = 0
        self.srcC=set(); self.srcAB=set()
        if self.is_label or self.is_dir or not t: return
        parts = t.split(None,1)
        self.op = op = parts[0]
        rest = parts[1] if len(parts)>1 else ''
        ops = []
        depth=0; cur=''
        for ch in rest:
            if ch=='[' or ch=='(': depth+=1
            if ch==']' or ch==')': depth-=1
            if ch==',' and depth==0: ops.append(cur.strip()); cur=''
            else: cur+=ch
        if cur.strip(): ops.append(cur.strip())
        mods=''
        if ops:
            sp = ops[-1].split(None,1)
            ops[-1]=sp[0]; mods = sp[1] if len(sp)>1 else ''
        self.ops=ops; self.mods=mods
        self.states = 1
        if op=='s_nop': self.states = int(ops[0],0)+1
        R=[regs_of(o) for o in ops]
        self.valu = op.startswith('v_') and not op.startswith('v_mfma')
        self.mfma = op.startswith('v_mfma')
        self.trans = op.startswith(TRANS)
        self.dpp = '_dpp' in op or 'row_' in mods or 'quad_perm' in mods
        self.vmem = op.startswith(('buffer_','global_','flat_'))
        self.ds = op.startswith('ds_')
        self.salu = op.startswith('s_')
        self.ldsdma = self.vmem and ('_lds_' in op or re.search(r'\blds\b', mods) is not None)
        self.widestore=False
        allr=set().union(*R) if R else set()
        if self.mfma:
            self.dst=R[0]; self.srcAB=R[1]|R[2]; self.srcC=R[3]; self.src=self.srcAB|self.srcC
            self.passes = 8 if '32x32x16' in op or '32x32x8' in op else 4
        elif self.valu:
            if op.startswith(('v_swap','v_permlane16_swap','v_permlane32_swap')):
                self.dst=R[0]|R[1]; self.src=set(self.dst)
            elif op.startswith(('v_add_co','v_sub_co','v_addc_co','v_subb_co','v_subrev_co','v_mad_u64','v_div_scale')):
                self.dst=R[0]|R[1]; self.src=set().union(*R[2:])
            else:
                self.dst=R[0]; self.src=set().union(*R[1:]) if len(R)>1 else set()
                if op.startswith(('v_fmac','v_writelane','v_pk_fmac')) or self.dpp or 'sdwa' in op: self.src|=R[0]
                if op.startswith('v_cmpx'): self.dst|={('exec',0)}
        elif self.vmem:
            if 'store' in op or ('atomic' in op) or self.ldsdma or op in('buffer_inv','buffer_wbl2'):
                self.src=allr
                if 'atomic' in op and 'sc0' in mods: self.dst=R[0]
                if 'store' in op and ('x4' in op or 'x3' in op):
                    self.widestore=True
                    self.sdata = R[0] if op.startswith('buffer') else R[1]
                if self.ldsdma: self.src=self.src|{('m0',0)}
            else:
                self.dst=R[0]; self.src=set().union(*R[1:])
        elif self.ds:
            if op.startswith(('ds_read','ds_bpermute','ds_permute','ds_swizzle')) or '_rtn' in op:
                self.dst=R[0]; self.src=set().union(*R[1:])
            else: self.src=allr
        elif self.salu:
            if op.startswith(('s_cmp','s_cbranch','s_branch','s_waitcnt','s_barrier','s_nop','s_endpgm','s_setprio','s_sleep','s_bitcmp','s_setpc')):
                self.src=allr
            else:
                self.dst=R[0] if R else set(); self.src=set().union(*R[1:]) if len(R)>1 else set()
                if 'saveexec' in op: self.dst=self.dst|{('exec',0)}

def need(p, c):
    n=0
    def isv(s): return {r for r in s if r[0] in 'va' and r[0]!='vcc'}
    def iss(s): return {r for r in s if r[0] in ('s','vcc')}
    if p.valu:
        vd=isv(p.dst); sd=iss(p.dst)
        if c.mfma and vd & c.src: n=max(n,2)
        if c.valu and c.dpp and vd & c.src: n=max(n,2)
        if c.op.startswith('v_permlane') and vd & c.src: n=max(n,2)
        if c.op.startswith(('v_readlane','v_readfirstlane')) and vd & c.src: n=max(n,1)
        if p.trans and (c.valu or c.mfma or c.vmem or c.ds) and vd & c.src: n=max(n,1)
        if sd:
            if c.valu and sd & c.src: n=max(n, 4 if c.op.startswith(('v_readlane','v_writelane')) else 2)
            if c.vmem and sd & c.src: n=max(n,5)
            if c.salu and sd & c.src: n=max(n,1)
            if c.op in('s_cbranch_vccz','s_cbranch_vccnz') and ('vcc',0) in sd: n=max(n,1)
        if ('exec',0) in p.dst:
            if c.mfma or c.op.startswith(('v_readlane','v_readfirstlane','v_permlane')): n=max(n,4)
            if c.valu and c.dpp: n=max(n,5)
        if 'op_sel' in p.mods and not p.op.startswith('v_pk') and c.valu and vd & (c.src|c.dst): n=max(n,1)
    if p.salu and ('m0',0) in p.dst and c.ldsdma: n=max(n,1)
    if p.widestore and (c.valu or c.mfma or c.ds or c.vmem) and p.sdata & c.dst: n=max(n,2)
    if p.mfma:
        k = {4:(6,8,3), 8:(10,12,7)}[p.passes]
        if c.mfma:
            if p.dst & c.srcAB: n=max(n,k[1])
            if p.dst & c.srcC and not (p.dst==c.srcC and p.passes==c.passes): n=max(n,k[0])
            if p.dst & c.dst and not (p.dst==c.dst and p.passes==c.passes): n=max(n,k[1])
        elif c.valu or c.vmem or c.ds:
            if p.dst & (c.src|c.dst): n=max(n,k[1])
            if c.valu and p.srcC & c.dst: n=max(n,k[2])
    return n

class Asm:
    def __init__(self):
        self.lines=[]
        self.padded=0
    def __call__(self, text):
        for ln in text.split('\n'):
            t=ln.strip()
            if not t: continue
            self.add(t)
    def add(self, t):
        ins=Ins(t)
        if ins.op:
            dist=0; req=0
            for p in reversed(self.lines):
                if dist>=20: break
                if not p.op: continue
                if p.op in ('s_endpgm','s_branch','s_setpc_b64'): break
                r=need(p,ins)-dist
                if r>req: req=r
                dist+=p.states
            if req>0:
                self.lines.append(Ins(f's_nop {req-1}'))
                self.padded+=req
        self.lines.append(ins)
    def text(self):
        out=[]
        for i in self.lines:
            out.append(i.text if (i.is_label or i.is_dir) else '    '+i.text)
        return '\n'.join(out)+'\n'

def vr(a,n=1): return f'v{a}' if n==1 else f'v[{a}:{a+n-1}]'
def sr(a,n=1): return f's{a}' if n==1 else f's[{a}:{a+n-1}]'

def interleave(main, fill, start=0, per=1):
    out=[]; fi=0
    for i,m in enumerate(main):
        out.append(m)
        if i>=start:
            for _ in range(per):
                if fi<len(fill): out.append(fill[fi]); fi+=1
    out+=fill[fi:]
    return out
```

```python
import sys, math, struct
sys.path.insert(0,'scratch')
from asmlib import *

HEAD = 81920
WS_Q = 0
WS_K = 32*HEAD
WS_V = 64*HEAD
WS_O = 96*HEAD
WS_G = 128*HEAD
GP = 5248
G_BYTES = 16*32*GP
WS_END = WS_G + G_BYTES
WS_STAMP = 32<<20
WS_SIZE = 268435456

def f2u(x): return struct.unpack('<I', struct.pack('<f', x))[0]
QSCALE = (20**-0.5) * math.log2(math.e)

class Opt:
    stamps = False
OPT = Opt()

def stamp(a, idx, sreg=90):
    if OPT.stamps:
        a(f's_memtime s[{60+2*idx}:{61+2*idx}]')

def stamp_store(a, kidx, nst, ws_lo, wave_s, wg_s='s2', vt=1):
    if not OPT.stamps: return
    a('s_waitcnt vmcnt(0)')
    a(f's_memtime s[{60+2*nst}:{61+2*nst}]')
    a('s_memrealtime s[58:59]')
    a('s_waitcnt lgkmcnt(0)')
    a(f's_lshl_b32 s54, {wg_s}, 4\ns_add_u32 s54, s54, {wave_s}\ns_lshl_b32 s54, s54, 6\ns_add_u32 s54, s54, {WS_STAMP + kidx*(1<<20)}')
    a(f'v_mov_b32 v{vt}, s54')
    a('s_mov_b64 exec, 1')
    vals = ['s56','s58'] + [f's{60+2*i}' for i in range(nst+1)]
    for i,v in enumerate(vals):
        a(f'v_mov_b32 v{vt+1}, {v}\nglobal_store_dword v{vt}, v{vt+1}, s[{ws_lo}:{ws_lo+1}] offset:{4*i}')
    a('s_waitcnt vmcnt(0)')

def header(a, name):
    a(f'.globl {name}\n.p2align 8\n.type {name},@function\n{name}:')

def descriptor(name, vgpr, sgpr=100):
    nv = (vgpr+3)//4*4
    return f""".p2align 6
.amdhsa_kernel {name}
  .amdhsa_next_free_vgpr {nv}
  .amdhsa_next_free_sgpr {sgpr}
  .amdhsa_accum_offset {nv}
  .amdhsa_group_segment_fixed_size 0
  .amdhsa_kernarg_size 88
  .amdhsa_user_sgpr_count 2
  .amdhsa_user_sgpr_kernarg_segment_ptr 1
  .amdhsa_system_sgpr_workgroup_id_x 1
.end_amdhsa_kernel
"""

XB = 16384
WPITCH = 5152
STG = XB + 4*WPITCH
NSLOT = 4
K1_LDS = NSLOT*STG

def gen_k1(a):
    header(a, 'k1_kernel')
    if OPT.stamps: a('s_memrealtime s[56:57]')
    stamp(a,0)
    a("""
    s_cmp_ge_u32 s2, 256
    s_cbranch_scc1 K1_END
    s_load_dwordx2 s[8:9], s[0:1], 0
    s_load_dwordx8 s[12:19], s[0:1], 24
    s_load_dwordx2 s[20:21], s[0:1], 80
    v_lshrrev_b32 v1, 6, v0
    s_and_b32 s3, s2, 3
    v_readfirstlane_b32 s6, v1
    s_lshl_b32 s4, s2, 1
    s_and_b32 s4, s4, 8
    s_bfe_u32 s5, s2, 0x30003
    s_or_b32 s4, s4, s5
    s_lshr_b32 s5, s2, 6
    v_and_b32 v0, 63, v0
    s_cmp_lt_u32 s6, 4
    s_cbranch_scc1 K1_COMPUTE
    """)
    vX = 8; vW = 12
    a("""
    s_sub_u32 s7, s6, 4
    v_lshrrev_b32 v1, 3, v0
    v_and_b32 v2, 7, v0
    v_and_b32 v3, 2, v1
    v_lshrrev_b32 v4, 2, v1
    v_or_b32 v3, v3, v4
    v_xor_b32 v2, v2, v3
    v_lshlrev_b32 v2, 4, v2
    v_xor_b32 v3, 64, v2
    s_mov_b64 s[46:47], -1
    s_movk_i32 s28, 1280
    s_cmp_eq_u32 s3, 3
    s_cbranch_scc1 K1_LD_A
    """)
    a("""
    s_lshl_b32 s24, s4, 7
    s_lshl_b32 s25, s7, 5
    s_add_u32 s24, s24, s25
    s_cmp_eq_u32 s3, 2
    s_cselect_b32 s25, 16, 8
    s_cselect_b32 s26, 4, 16
    s_cselect_b32 s27, 4, 0
    v_and_b32 v4, s27, v1
    v_add_u32 v4, v4, v1
    s_mul_i32 s29, s7, 16*3840
    s_mul_i32 s30, s3, 1280
    s_add_u32 s29, s29, s30
    s_mul_i32 s30, s5, 320
    s_add_u32 s29, s29, s30
    s_movk_i32 s30, 3277
    s_movk_i32 s31, 3520
    """)
    for i in range(5):
        a(f"""
        v_add_u32 v5, {64*i}, v0
        v_mul_u32_u24 v6, s30, v5
        v_lshrrev_b32 v6, 16, v6
        v_lshl_add_u32 v5, v5, 4, s29
        v_mad_u32_u24 v{vW+i}, v6, s31, v5
        """)
    a(f"""
    s_mov_b32 s44, {64*3840}
    s_mul_i32 s45, s7, {WPITCH}
    s_waitcnt lgkmcnt(0)
    s_mov_b64 s[32:33], s[16:17]
    """)
    for i in range(5): a(f's_mov_b64 s[{34+2*i}:{35+2*i}], s[18:19]')
    a('s_branch K1_LD_COMMON')
    a('K1_LD_A:')
    a("""
    s_lshl_b32 s24, s4, 3
    s_lshl_b32 s25, s7, 1
    s_add_u32 s24, s24, s25
    s_movk_i32 s25, 1024
    s_movk_i32 s26, 1
    v_lshlrev_b32 v4, 7, v1
    s_mul_i32 s29, s5, 80
    s_lshr_b32 s30, s7, 1
    s_mul_i32 s30, s30, 40
    s_add_u32 s29, s29, s30
    s_add_u32 s29, s29, 1
    v_add_u32 v5, s29, v1
    v_mul_u32_u24 v5, s28, v5
    s_and_b32 s31, s7, 1
    s_lshl_b32 s30, s31, 6
    v_xor_b32 v6, s30, v2
    v_xor_b32 v7, s30, v3
    v_add_u32 v6, v6, v5
    v_add_u32 v7, v7, v5
    s_cmp_eq_u32 s31, 0
    """)
    tab = [(0,0),(0,8),(1,0),(1,8),(0,16),(0,24),(1,16),(1,24),(0,32),(1,32)]
    for i in range(5):
        a(f's_cselect_b32 s30, {tab[i][1]}, {tab[5+i][1]}')
        a(f's_mul_i32 s30, s30, 1280')
        a(f'v_add_u32 v{vW+i}, s30, v{6+(i&1)}')
    a(f"""
    s_movk_i32 s44, 128
    s_mul_i32 s45, s7, 5120
    s_waitcnt lgkmcnt(0)
    s_mov_b64 s[32:33], s[8:9]
    """)
    for i in range(5):
        p0 = 's[14:15]' if tab[i][0] else 's[12:13]'
        p1 = 's[14:15]' if tab[5+i][0] else 's[12:13]'
        a(f's_cselect_b64 s[{34+2*i}:{35+2*i}], {p0}, {p1}')
    a(f"""
    s_lshl_b32 s30, s5, 2
    s_or_b32 s30, s30, s7
    s_cmp_eq_u32 s30, 15
    s_cbranch_scc0 K1_LD_COMMON
    s_mov_b32 s47, 0x00ffffff
    v_mov_b32 v20, 0x3f803f80
    v_mov_b32 v21, v20
    v_mov_b32 v22, v20
    v_mov_b32 v23, v20
    v_and_b32 v5, 3, v1
    v_and_b32 v6, 7, v0
    v_lshlrev_b32 v6, 4, v6
    s_mov_b32 s30, {STG}
    v_mad_u32_u24 v5, v5, s30, v6
    ds_write_b128 v5, v[20:23] offset:{XB+159*128}
    s_waitcnt lgkmcnt(0)
    """)
    a('K1_LD_COMMON:')
    a("""
    v_add_u32 v4, s24, v4
    v_mad_u32_u24 v8, v4, s28, v2
    v_add_u32 v5, s25, v4
    v_mad_u32_u24 v9, v5, s28, v3
    v_add_u32 v4, s26, v4
    v_mad_u32_u24 v10, v4, s28, v2
    v_add_u32 v5, s26, v5
    v_mad_u32_u24 v11, v5, s28, v3
    """)
    a(f"""
    s_lshl_b32 s48, s7, 12
    s_add_u32 s45, s45, {XB}
    s_mov_b32 s49, 0
    s_mov_b32 s50, 0
    K1_LD_LOOP:
    s_cmp_lt_u32 s49, {NSLOT}
    s_cbranch_scc1 K1_LD_ISSUE
    s_waitcnt vmcnt({9*(NSLOT-2)})
    s_barrier
    K1_LD_ISSUE:
    s_add_u32 m0, s50, s48
    """)
    for i in range(4):
        a(f'global_load_lds_dwordx4 v{vX+i}, s[32:33]')
        if i<3: a('s_add_u32 m0, m0, 1024')
    a('s_add_u32 m0, s50, s45')
    a('s_add_u32 s32, s32, 128\ns_addc_u32 s33, s33, 0')
    for i in range(5):
        if i==4: a('s_mov_b64 exec, s[46:47]')
        a(f'global_load_lds_dwordx4 v{vW+i}, s[{34+2*i}:{35+2*i}]')
        if i==4: a('s_mov_b64 exec, -1')
        if i<4: a('s_add_u32 m0, m0, 1024')
        a(f's_add_u32 s{34+2*i}, s{34+2*i}, s44\ns_addc_u32 s{35+2*i}, s{35+2*i}, 0')
    a(f"""
    s_add_u32 s50, s50, {STG}
    s_cmp_eq_u32 s50, {NSLOT*STG}
    s_cselect_b32 s50, 0, s50
    s_cmp_eq_u32 s49, {NSLOT-1}
    s_cbranch_scc0 K1_LD_NEXT
    s_waitcnt vmcnt({9*(NSLOT-1)})
    s_barrier
    K1_LD_NEXT:
    s_add_u32 s49, s49, 1
    s_cmp_lt_u32 s49, 10
    s_cbranch_scc1 K1_LD_LOOP
    """)
    for r in range(NSLOT-2,-1,-1):
        a(f's_waitcnt vmcnt({9*r})\ns_barrier')
    stamp_store(a,0,1,20,'s6')
    a('s_endpgm')

    ACC=0+16; XF=[96,112]; WF=[128,148]
    acc = lambda mt,j: ACC + (mt*5+j)*4
    a('K1_COMPUTE:')
    a("""
    s_and_b32 s24, s6, 1
    s_lshr_b32 s25, s6, 1
    v_and_b32 v1, 15, v0
    v_lshrrev_b32 v2, 4, v0
    v_lshrrev_b32 v3, 1, v1
    v_and_b32 v3, 4, v3
    v_and_b32 v4, 2, v1
    v_or_b32 v3, v3, v4
    v_bfe_u32 v4, v1, 2, 1
    v_or_b32 v3, v3, v4
    v_and_b32 v12, 1, v2
    v_lshrrev_b32 v13, 1, v2
    v_lshl_or_b32 v4, v12, 1, v13
    v_xor_b32 v3, v3, v4
    v_lshlrev_b32 v3, 4, v3
    v_lshl_add_u32 v3, v1, 7, v3
    s_lshl_b32 s26, s24, 13
    v_add_u32 v4, s26, v3
    v_xor_b32 v5, 64, v4
    """)
    for r in range(80): a(f'v_mov_b32 v{ACC+r}, 0')
    a(f"""
    s_mov_b32 s22, {WS_SIZE}
    s_mov_b32 s23, 0x00020000
    s_mov_b32 s50, 0
    s_mov_b32 s49, 9
    s_cmp_eq_u32 s3, 3
    s_cbranch_scc1 K1_C_A
    v_lshrrev_b32 v14, 2, v1
    v_lshl_add_u32 v14, v13, 3, v14
    s_movk_i32 s26, 320
    s_movk_i32 s27, {WPITCH}
    v_mul_u32_u24 v6, s27, v12
    v_mad_u32_u24 v6, v14, s26, v6
    s_mul_i32 s26, s25, 160
    s_add_u32 s26, s26, {XB}
    v_add_u32 v6, s26, v6
    v_and_b32 v7, 3, v1
    s_cmp_eq_u32 s3, 2
    s_cbranch_scc1 K1_C_V
    v_mad_u32_u24 v6, v7, 40, v6
    """)
    def reads(kind, ks, st):
        L=[]
        xs=[f'ds_read_b128 {vr(XF[st]+4*mt,4)}, v{8+ks} offset:{mt*2048}' for mt in range(4)]
        if kind=='A':
            ws=[f'ds_read_b128 {vr(WF[st]+4*j,4)}, v{10+ks} offset:{j*2048}' for j in range(5)]
        else:
            js = 8 if kind=='QK' else 32
            ws=[]
            for j in range(5):
                for hf in range(2):
                    ws.append(f'ds_read_b64_tr_b16 {vr(WF[st]+4*j+2*hf,2)}, v10 offset:{ks*2*WPITCH+hf*1280+js*j}')
        return xs+ws
    def mfmas(kind, st):
        L=[]
        for mt in range(4):
            for j in range(5):
                x=vr(XF[st]+4*mt,4); w=vr(WF[st]+4*j,4); c=vr(acc(mt,j),4)
                if kind=='QK': L.append(f'v_mfma_f32_16x16x32_bf16 {c}, {w}, {x}, {c}')
                else: L.append(f'v_mfma_f32_16x16x32_bf16 {c}, {x}, {w}, {c}')
        return L
    def setaddr(kind):
        L=['v_add_u32 v8, s50, v4','v_add_u32 v10, s50, v6','v_add_u32 v9, s50, v5']
        if kind=='A': L.append('v_add_u32 v11, s50, v7')
        return L
    def mainloop(kind):
        for t in setaddr(kind): a(t)
        a('s_waitcnt lgkmcnt(0)')
        a('s_barrier')
        stamp(a,1)
        for t in reads(kind,0,0): a(t)
        a(f's_branch K1_{kind}_MID')
        a('.p2align 6')
        a(f'K1_{kind}_LOOP:')
        a('s_barrier')
        for t in interleave(mfmas(kind,1), reads(kind,0,0)): a(t)
        a(f'K1_{kind}_MID:')
        a('s_waitcnt lgkmcnt(0)')
        adv=[f's_add_u32 s50, s50, {STG}', f's_cmp_eq_u32 s50, {NSLOT*STG}', 's_cselect_b32 s50, 0, s50']
        m=mfmas(kind,0); rd=reads(kind,1,1)
        seq=interleave(m, rd+adv)
        for t in seq: a(t)
        for t in setaddr(kind): a(t)
        a(f"""
        s_sub_u32 s49, s49, 1
        s_waitcnt lgkmcnt(0)
        s_cbranch_scc0 K1_{kind}_LOOP
        """)
        for t in mfmas(kind,1): a(t)
        stamp(a,2)
    T=96
    mainloop('QK')
    a(f"""
    s_lshl_b32 s26, s5, 3
    s_lshl_b32 s27, s25, 2
    s_add_u32 s26, s26, s27
    v_add_u32 v8, s26, v2
    s_mov_b32 s27, {HEAD}
    v_mul_lo_u32 v8, v8, s27
    s_lshl_b32 s26, s4, 7
    s_lshl_b32 s27, s24, 6
    s_add_u32 s26, s26, s27
    v_add_u32 v9, s26, v1
    v_lshl_add_u32 v10, v9, 3, v8
    v_lshl_add_u32 v9, v9, 4, v8
    s_mul_i32 s26, s3, {WS_K}
    s_add_u32 s27, s26, 32768
    s_add_u32 s28, s26, 65536
    s_cmp_eq_u32 s3, 0
    s_cselect_b32 s30, {hex(f2u(QSCALE))}, 1.0
    s_mov_b32 s31, s30
    """)
    for mt in range(4):
        t = 168 + (mt&1)*10
        for j in range(5):
            c=acc(mt,j)
            a(f'v_pk_mul_f32 {vr(c,2)}, {vr(c,2)}, s[30:31]')
            a(f'v_pk_mul_f32 {vr(c+2,2)}, {vr(c+2,2)}, s[30:31]')
        for j in range(5):
            c=acc(mt,j)
            a(f'v_cvt_pk_bf16_f32 v{t+2*j}, v{c}, v{c+1}')
            a(f'v_cvt_pk_bf16_f32 v{t+2*j+1}, v{c+2}, v{c+3}')
            if j==1: a(f'buffer_store_dwordx4 {vr(t,4)}, v9, s[20:23], s26 offen offset:{mt*256}')
            if j==3: a(f'buffer_store_dwordx4 {vr(t+4,4)}, v9, s[20:23], s27 offen offset:{mt*256}')
            if j==4: a(f'buffer_store_dwordx2 {vr(t+8,2)}, v10, s[20:23], s28 offen offset:{mt*128}')
    stamp_store(a,0,3,20,'s6')
    a('s_endpgm')
    a('K1_C_V:')
    a('v_lshl_add_u32 v6, v7, 3, v6')
    mainloop('V')
    a(f"""
    s_mul_i32 s26, s5, 160
    s_mul_i32 s27, s25, 80
    s_add_u32 s26, s26, s27
    v_add_u32 v8, s26, v1
    s_lshl_b32 s26, s4, 4
    s_lshl_b32 s27, s24, 3
    s_add_u32 s26, s26, s27
    v_add_u32 v9, s26, v2
    s_movk_i32 s27, 320
    v_mul_u32_u24 v9, s27, v9
    s_movk_i32 s28, 3277
    s_mov_b32 s29, {HEAD-320}
    s_mov_b32 s26, {WS_V}
    """)
    for j in range(5):
        a(f"""
        v_add_u32 v10, {16*j}, v8
        v_mul_u32_u24 v11, s28, v10
        v_lshrrev_b32 v11, 16, v11
        v_lshl_add_u32 v10, v10, 4, v9
        v_mad_u32_u24 v{168+j}, v11, s29, v10
        """)
    k=0
    for m in range(2):
        for j in range(5):
            t=176+4*(k%3); k+=1
            c0=acc(2*m,j); c1=acc(2*m+1,j)
            a(f"""
            v_cvt_pk_bf16_f32 v{t}, v{c0}, v{c0+1}
            v_cvt_pk_bf16_f32 v{t+1}, v{c0+2}, v{c0+3}
            v_cvt_pk_bf16_f32 v{t+2}, v{c1}, v{c1+1}
            v_cvt_pk_bf16_f32 v{t+3}, v{c1+2}, v{c1+3}
            buffer_store_dwordx4 {vr(t,4)}, v{168+j}, s[20:23], s26 offen offset:{m*1280}
            """)
    stamp_store(a,0,3,20,'s6')
    a('s_endpgm')
    a('K1_C_A:')
    F=168
    a(f"""
    s_mul_i32 s26, s25, 80*128
    s_add_u32 s26, s26, {XB}
    v_add_u32 v6, s26, v3
    v_xor_b32 v7, 64, v6
    v_lshlrev_b32 v14, 2, v2
    """)
    for x in range(4):
        a(f"""
        v_add_u32 v15, {x}, v14
        v_mul_u32_u24 v15, v15, v1
        v_and_b32 v15, 15, v15
        v_cvt_f32_u32 v15, v15
        v_mul_f32 v15, 0x3d800000, v15
        v_cos_f32 v{176+x}, v15
        v_sin_f32 v{180+x}, v15
        """)
    a(f"""
    v_cvt_pk_bf16_f32 v{F}, v176, v177
    v_cvt_pk_bf16_f32 v{F+1}, v178, v179
    v_cvt_pk_bf16_f32 v{F+2}, v180, v181
    v_cvt_pk_bf16_f32 v{F+3}, v182, v183
    v_xor_b32 v{F+4}, 0x80008000, v{F}
    v_xor_b32 v{F+5}, 0x80008000, v{F+1}
    v_cmp_le_u32 vcc, 8, v1
    v_mov_b32 v175, 0x80008000
    v_cndmask_b32 v174, 0, v175, vcc
    """)
    mainloop('A')
    a(f"""
    s_lshl_b32 s26, s4, 1
    s_add_u32 s26, s26, s24
    v_lshl_add_u32 v8, v2, 7, s26
    s_movk_i32 s27, {GP}
    v_mul_lo_u32 v10, v8, s27
    s_mul_i32 s26, s5, 80
    s_mul_i32 s27, s25, 40
    s_add_u32 s26, s26, s27
    v_add_u32 v8, s26, v1
    v_lshl_add_u32 v8, v8, 4, v10
    v_and_b32 v9, 7, v1
    v_add_u32 v9, s26, v9
    v_lshl_add_u32 v9, v9, 4, v10
    v_and_b32 v11, 8, v1
    v_add_u32 v9, v9, v11
    s_mov_b32 s26, {WS_G}
    s_mov_b32 s27, {WS_G+32*GP}
    s_mov_b32 s28, {WS_G+64*GP}
    s_mov_b32 s29, {WS_G+96*GP}
    """)
    B=176
    for p in range(2):
        for mt in range(4):
            b=B+4*mt
            cr=acc(mt,2*p); ci=acc(mt,2*p+1)
            a(f"""
            v_cvt_pk_bf16_f32 v{b}, v{cr}, v{cr+1}
            v_cvt_pk_bf16_f32 v{b+1}, v{cr+2}, v{cr+3}
            v_cvt_pk_bf16_f32 v{b+2}, v{ci}, v{ci+1}
            v_cvt_pk_bf16_f32 v{b+3}, v{ci+2}, v{ci+3}
            """)
        for mt in range(4):
            b=B+4*mt
            cr=acc(mt,2*p); ci=acc(mt,2*p+1)
            a(f'v_mfma_f32_16x16x32_bf16 {vr(cr,4)}, {vr(F,4)}, {vr(b,4)}, 0')
            a(f'v_mfma_f32_16x16x32_bf16 {vr(ci,4)}, {vr(F+2,4)}, {vr(b,4)}, 0')
    for mt in range(4):
        b=96+6*mt; c=acc(mt,4)
        a(f"""
        v_cvt_pk_bf16_f32 v{b+4}, v{c}, v{c+1}
        v_cvt_pk_bf16_f32 v{b+5}, v{c+2}, v{c+3}
        """)
    for mt in range(4):
        b=96+6*mt
        a(f"""
        v_mov_b32_dpp v{b+2}, v{b+4} row_ror:8 row_mask:0xf bank_mask:0xf
        v_mov_b32_dpp v{b+3}, v{b+5} row_ror:8 row_mask:0xf bank_mask:0xf
        v_xor_b32 v{b}, v174, v{b+4}
        v_xor_b32 v{b+1}, v174, v{b+5}
        """)
    a(f"""
    s_lshl_b32 s30, s5, 1
    s_or_b32 s30, s30, s25
    s_cmp_eq_u32 s30, 7
    s_cbranch_scc0 K1_A_NOSPEC
    """)
    for mt in range(4):
        b=96+6*mt; d=120+4*mt
        for x in range(4): a(f'v_mov_b32 v{d+x}, v{b+2+x}')
    a('s_mov_b32 exec_lo, 0x00800080\ns_mov_b32 exec_hi, 0x00800080')
    for mt in range(4):
        b=96+6*mt; d=120+4*mt
        for r in (b+2,b+3,d+2,d+3): a(f'v_mov_b32 v{r}, 0')
    a('s_mov_b32 exec_lo, 0x80008000\ns_mov_b32 exec_hi, 0x80008000')
    for mt in range(4):
        b=96+6*mt; d=120+4*mt
        for r in (b,b+1,d,d+1): a(f'v_mov_b32 v{r}, 0')
    a('s_mov_b64 exec, -1')
    for mt in range(4):
        a(f'v_mfma_f32_16x16x32_bf16 {vr(136+4*mt,4)}, {vr(F,4)}, {vr(120+4*mt,4)}, 0')
    a('s_nop 7')
    a('s_mov_b32 exec_lo, 0x80808080\ns_mov_b32 exec_hi, 0x80808080')
    for r in range(4):
        a(f"""
        v_cvt_pk_bf16_f32 v{152+2*r}, v{136+r}, v{140+r}
        v_cvt_pk_bf16_f32 v{153+2*r}, v{144+r}, v{148+r}
        buffer_store_dwordx2 {vr(152+2*r,2)}, v9, s[20:23], s{26+r} offen offset:{512+16}
        """)
    a('s_mov_b64 exec, -1')
    a('K1_A_NOSPEC:')
    for mt in range(4):
        a(f'v_mfma_f32_16x16x32_bf16 {vr(acc(mt,4),4)}, {vr(F,4)}, {vr(96+6*mt,4)}, 0')
    k=0
    for p in range(2):
        for r in range(4):
            t=176+4*(k%4); k+=1
            a(f"""
            v_cvt_pk_bf16_f32 v{t}, v{acc(0,2*p)+r}, v{acc(1,2*p)+r}
            v_cvt_pk_bf16_f32 v{t+1}, v{acc(2,2*p)+r}, v{acc(3,2*p)+r}
            v_cvt_pk_bf16_f32 v{t+2}, v{acc(0,2*p+1)+r}, v{acc(1,2*p+1)+r}
            v_cvt_pk_bf16_f32 v{t+3}, v{acc(2,2*p+1)+r}, v{acc(3,2*p+1)+r}
            buffer_store_dwordx4 {vr(t,4)}, v8, s[20:23], s{26+r} offen offset:{p*256}
            """)
    for r in range(4):
        t=160+2*r
        a(f"""
        v_cvt_pk_bf16_f32 v{t}, v{acc(0,4)+r}, v{acc(1,4)+r}
        v_cvt_pk_bf16_f32 v{t+1}, v{acc(2,4)+r}, v{acc(3,4)+r}
        buffer_store_dwordx2 {vr(t,2)}, v9, s[20:23], s{26+r} offen offset:512
        """)
    stamp_store(a,0,3,20,'s6')
    a('K1_END:')
    a('s_endpgm')
    return 192


K2_LDS = 40960
O_PERM = [0,1,2,3,4,5,6,7,12,13,14,15,8,9,10,11,16,17,18,19]
SHIFT_C = 32.0
OUT_BYTES = 2048*1280*2

def gen_k2(a):
    header(a, 'k2_kernel')
    if OPT.stamps: a('s_memrealtime s[56:57]')
    stamp(a,0)
    a(f"""
    s_cmp_ge_u32 s2, 256
    s_cbranch_scc1 K2_END
    s_load_dwordx2 s[20:21], s[0:1], 80
    s_load_dwordx4 s[12:15], s[0:1], 8
    s_load_dwordx2 s[16:17], s[0:1], 64
    v_lshrrev_b32 v1, 6, v0
    v_and_b32 v0, 63, v0
    v_readfirstlane_b32 s6, v1
    s_mov_b32 s22, {WS_SIZE}
    s_mov_b32 s23, 0x00020000
    v_and_b32 v1, 31, v0
    v_lshrrev_b32 v2, 5, v0
    v_and_b32 v3, 0x13, v1
    v_and_b32 v4, 4, v1
    v_lshl_or_b32 v3, v4, 1, v3
    v_and_b32 v4, 8, v1
    v_lshrrev_b32 v4, 1, v4
    v_or_b32 v3, v3, v4
    s_cmp_ge_u32 s6, 8
    s_cbranch_scc1 K2_A2
    """)
    a(f"""
    s_and_b32 s3, s2, 7
    s_lshr_b32 s4, s2, 6
    s_lshl_b32 s4, s4, 3
    s_or_b32 s3, s3, s4
    s_bfe_u32 s4, s2, 0x30003
    s_mul_i32 s5, s3, {HEAD}
    s_lshr_b32 s7, s6, 2
    s_and_b32 s8, s6, 3
    s_add_u32 s9, s4, s7
    s_sub_u32 s9, s9, 1
    s_lshl_b32 s10, s8, 10
    v_lshlrev_b32 v4, 4, v0
    s_lshl_b32 s24, s4, 8
    s_lshl_b32 s25, s6, 5
    s_add_u32 s24, s24, s25
    v_add_u32 v5, s24, v1
    v_lshlrev_b32 v6, 15, v2
    v_add_u32 v6, s5, v6
    v_lshl_add_u32 v124, v5, 4, v6
    v_lshlrev_b32 v6, 30, v2
    v_add_u32 v6, s5, v6
    v_lshl_add_u32 v125, v5, 3, v6
    s_add_u32 s26, s5, s10
    s_lshl_b32 s27, s9, 12
    s_add_u32 s27, s27, s26
    s_add_u32 s27, s27, {WS_K}
    s_mul_i32 s28, s9, 10240
    s_add_u32 s28, s28, s26
    s_add_u32 s28, s28, {WS_V}
    s_lshl_b32 s29, s9, 11
    s_add_u32 s29, s29, s26
    s_add_u32 s29, s29, {WS_K+65536}
    s_lshl_b32 s30, s7, 12
    s_add_u32 s30, s30, s10
    s_mul_i32 s31, s7, 10240
    s_add_u32 s31, s31, s10
    s_add_u32 s31, s31, 20480
    s_lshl_b32 s32, s7, 11
    s_add_u32 s32, s32, s10
    s_add_u32 s32, s32, 16384
    s_add_u32 s33, s28, 6144
    s_add_u32 s34, s31, 6144
    s_cmp_lt_u32 s8, 2
    s_cselect_b32 s29, s29, s33
    s_cselect_b32 s32, s32, s34
    s_mov_b32 s35, 65536
    s_waitcnt lgkmcnt(0)
    s_cmp_lt_i32 s9, 0
    s_cbranch_scc1 K2_NODMA
    s_mov_b32 m0, s30
    s_add_u32 s33, s27, 32768
    buffer_load_dwordx4 v4, s[20:23], s27 offen lds
    s_add_u32 m0, s30, 8192
    s_add_u32 s34, s28, 4096
    buffer_load_dwordx4 v4, s[20:23], s33 offen lds
    s_mov_b32 m0, s32
    s_nop 0
    buffer_load_dwordx4 v4, s[20:23], s29 offen lds
    s_mov_b32 m0, s31
    s_nop 0
    buffer_load_dwordx4 v4, s[20:23], s28 offen lds
    s_add_u32 m0, s31, 4096
    s_nop 0
    buffer_load_dwordx4 v4, s[20:23], s34 offen lds
    K2_NODMA:
    buffer_load_dwordx4 v[12:15], v124, s[20:23], 0 offen
    buffer_load_dwordx2 v[16:17], v125, s[20:23], s35 offen
    """)
    Q1=12; Q2=16; KA=20; KB=28; VLO=36; VHI=40; V0LO=44; V0HI=48; M=52; P=60; P0=68; SA=76; SB=92; O=108
    MX=126
    a(f"""
    s_lshl_b32 s25, s6, 5
    v_add_u32 v5, s25, v3
    v_lshlrev_b32 v6, 13, v2
    v_lshl_add_u32 v8, v5, 4, v6
    v_lshlrev_b32 v9, 3, v5
    v_add_u32 v9, 16384, v9
    v_lshrrev_b32 v5, 2, v1
    v_lshlrev_b32 v5, 2, v5
    s_mov_b32 s25, 0x42130
    v_lshrrev_b32 v5, v5, s25
    v_and_b32 v5, 7, v5
    v_and_b32 v6, 3, v1
    v_lshl_or_b32 v5, v5, 2, v6
    s_lshl_b32 s25, s6, 2
    v_add_u32 v6, s25, v2
    s_movk_i32 s25, 320
    v_mul_u32_u24 v6, s25, v6
    v_lshl_add_u32 v10, v5, 4, v6
    v_add_u32 v10, 20480, v10
    v_cmp_gt_u32 vcc, 32, v0
    v_mov_b32 v5, 0x3f803f80
    v_mov_b32 v6, 0x00003f80
    v_cndmask_b32 v{KA+6}, 0, v5, vcc
    v_cndmask_b32 v{KA+7}, 0, v6, vcc
    v_cndmask_b32 v{KB+6}, 0, v5, vcc
    v_cndmask_b32 v{KB+7}, 0, v6, vcc
    """)
    for r in range(16): a(f'v_mov_b32 v{VLO+r}, v5')
    MS=64 if not OPT.stamps else 68
    for r in range(16):
        j0=16*(r>>3)+(r&7)
        a(f's_mov_b32 s{MS+2*r}, {hex((0xffffffff<<j0)&0xffffffff)}')
        a(f's_mov_b32 s{MS+2*r+1}, {hex((0xffffffff<<(j0+8))&0xffffffff)}')
    a('v_mov_b32 v5, 0xffff\nv_mov_b32 v6, 0xffff0000')
    for x in range(8):
        a(f"""
        v_cndmask_b32 v{M+x}, 0, v5, s[{MS+4*x}:{MS+4*x+1}]
        v_cndmask_b32 v7, 0, v6, s[{MS+4*x+2}:{MS+4*x+3}]
        v_or_b32 v{M+x}, v{M+x}, v7
        """)
    a(f"""
    s_mov_b32 s36, 0x000fffff
    s_mov_b32 s37, 0x000fffff
    s_sub_u32 s38, 8, s6
    s_cmp_eq_u32 s4, 0
    s_cselect_b32 s38, s38, 0
    s_cselect_b32 s39, 1, 0
    s_mov_b32 s40, 0x07060302
    s_waitcnt vmcnt(0)
    s_barrier
    """)
    stamp(a,1)
    def rdK(dst,t): return [f'ds_read_b128 {vr(dst,4)}, v8 offset:{t*512}', f'ds_read_b64 {vr(dst+4,2)}, v9 offset:{t*256}']
    def rdV(dst,t,j): return f'ds_read_b128 {vr(dst,4)}, v10 offset:{t*1280+j*640}'
    def mS1(S,K): return f'v_mfma_f32_32x32x16_bf16 {vr(S,16)}, {vr(K,4)}, {vr(Q1,4)}, 0'
    def mS2(S,K): return f'v_mfma_f32_32x32x16_bf16 {vr(S,16)}, {vr(K+4,4)}, {vr(Q2,4)}, {vr(S,16)}'
    def mPV(V,Pr,first=False): return f'v_mfma_f32_32x32x16_bf16 {vr(O,16)}, {vr(V,4)}, {vr(Pr,4)}, {"0" if first else vr(O,16)}'
    a('K2_RESTART:')
    for t in rdK(KA,8)+rdK(KB,0): a(t)
    a('s_mov_b64 exec, s[36:37]')
    for t in [rdV(VLO,8,0),rdV(VHI,8,1),rdV(V0LO,0,0),rdV(V0HI,0,1)]: a(t)
    a('s_mov_b64 exec, -1')
    a(f'v_mov_b32 v{Q2+2}, 0\nv_mov_b32 v{Q2+3}, 0')
    a('s_waitcnt lgkmcnt(6)')
    a(mS1(SA,KA)); a(mS2(SA,KA))
    a('s_waitcnt lgkmcnt(4)')
    a(mS1(SB,KB)); a(mS2(SB,KB))
    for t in rdK(KA,7): a(t)
    a(f"""
    s_cmp_eq_u32 s38, 0
    s_cbranch_scc1 K2_T0OK
    s_nop 11
    """)
    for r in range(16): a(f'v_mov_b32 v{SB+r}, 0xff800000')
    a('K2_T0OK:')
    a('s_nop 7')
    for r in range(16): a(f'v_cndmask_b32 v{SA+r}, v{SB+r}, v{SA+r}, s[{MS+2*r}:{MS+2*r+1}]')
    a(f'v_max3_f32 v{MX}, v{SA}, v{SA+1}, v{SA+2}')
    a(f'v_max3_f32 v{MX+1}, v{SA+3}, v{SA+4}, v{SA+5}')
    for x in range(5):
        a(f'v_max3_f32 v{MX+(x&1)}, v{MX+(x&1)}, v{SA+6+2*x}, v{SA+7+2*x}')
    a(f'v_max_f32 v{MX}, v{MX}, v{MX+1}')
    a(f"""
    s_mov_b32 s41, {hex(f2u(SHIFT_C))}
    s_cmp_eq_u32 s39, 0
    s_cbranch_scc1 K2_HAVEMAX
    s_mov_b32 s41, 0
    s_max_u32 s42, s38, 1
    s_mov_b32 s43, 7
    v_add_u32 v5, {7*512}, v8
    v_add_u32 v6, {7*256}, v9
    K2_PASSA:
    s_cmp_lt_u32 s43, s42
    s_cbranch_scc1 K2_HAVEMAX
    ds_read_b128 {vr(KB,4)}, v5
    ds_read_b64 {vr(KB+4,2)}, v6
    v_subrev_u32 v5, 512, v5
    v_subrev_u32 v6, 256, v6
    s_sub_u32 s43, s43, 1
    s_waitcnt lgkmcnt(0)
    """)
    a(mS1(SB,KB)); a(mS2(SB,KB))
    for x in range(8):
        a(f'v_max3_f32 v{MX}, v{MX}, v{SB+2*x}, v{SB+1+2*x}')
    a('s_branch K2_PASSA')
    a('K2_HAVEMAX:')
    a(f"""
    v_mov_b32 v{MX+1}, v{MX}
    s_nop 1
    v_permlane32_swap_b32 v{MX}, v{MX+1}
    v_max_f32 v{MX}, v{MX}, v{MX+1}
    v_sub_f32 v{MX}, -v{MX}, s41
    v_and_b32 v5, 0xffff0000, v{MX}
    v_sub_f32 v5, v{MX}, v5
    v_perm_b32 v{Q2+2}, v5, v{MX}, s40
    v_and_b32 v6, 0xffff0000, v5
    v_sub_f32 v5, v5, v6
    v_lshrrev_b32 v{Q2+3}, 16, v5
    s_waitcnt lgkmcnt(0)
    """)
    a(mS1(SB,KA))
    for x in range(8): a(f'v_pk_add_f32 {vr(SA+2*x,2)}, {vr(SA+2*x,2)}, {vr(MX,2)} op_sel_hi:[1,0]')
    a(mS2(SB,KA))
    for t in rdK(KA,6): a(t)
    for r in range(8): a(f'v_exp_f32 v{SA+r}, v{SA+r}')
    for x in range(4): a(f'v_cvt_pk_bf16_f32 v{P0+x}, v{SA+2*x}, v{SA+2*x+1}')
    for x in range(4): a(f'v_and_b32 v{P+x}, v{P0+x}, v{M+x}')
    for r in range(8,12): a(f'v_exp_f32 v{SA+r}, v{SA+r}')
    a(mPV(VLO,P,True))
    a(f's_mov_b64 exec, s[36:37]\n{rdV(VLO,7,0)}\ns_mov_b64 exec, -1')
    for r in range(12,16): a(f'v_exp_f32 v{SA+r}, v{SA+r}')
    for x in range(4): a(f'v_xor_b32 v{P0+x}, v{P0+x}, v{P+x}')
    for x in range(4,8): a(f'v_cvt_pk_bf16_f32 v{P0+x}, v{SA+2*x}, v{SA+2*x+1}')
    for x in range(4,8): a(f'v_and_b32 v{P+x}, v{P0+x}, v{M+x}')
    a('s_cmp_eq_u32 s38, 0\ns_cbranch_scc0 K2_STEP7')
    a(mPV(V0LO,P0))
    for x in range(4,8): a(f'v_xor_b32 v{P0+x}, v{P0+x}, v{P+x}')
    a(mPV(V0HI,P0+4))
    a('K2_STEP7:')
    for t in range(7,0,-1):
        Sc = SB if (t&1) else SA
        Sn = SA if (t&1) else SB
        a(f's_cmp_gt_u32 s38, {t}\ns_cbranch_scc1 K2_EXIT')
        a('s_waitcnt lgkmcnt(0)')
        if t>1: a(mS1(Sn,KA))
        for r in range(0,4): a(f'v_exp_f32 v{Sc+r}, v{Sc+r}')
        a(mPV(VHI,P+4))
        for r in range(4,8): a(f'v_exp_f32 v{Sc+r}, v{Sc+r}')
        if t>1: a(mS2(Sn,KA))
        if t>2:
            for z in rdK(KA,t-2): a(z)
        for x in range(4): a(f'v_cvt_pk_bf16_f32 v{P+x}, v{Sc+2*x}, v{Sc+2*x+1}')
        for r in range(8,12): a(f'v_exp_f32 v{Sc+r}, v{Sc+r}')
        a(mPV(VLO,P))
        a('s_mov_b64 exec, s[36:37]')
        a(rdV(VHI,t,1))
        if t>1: a(rdV(VLO,t-1,0))
        a('s_mov_b64 exec, -1')
        for r in range(12,16): a(f'v_exp_f32 v{Sc+r}, v{Sc+r}')
        for x in range(4,8): a(f'v_cvt_pk_bf16_f32 v{P+x}, v{Sc+2*x}, v{Sc+2*x+1}')
    a('K2_EXIT:')
    a('s_waitcnt lgkmcnt(0)\ns_nop 0')
    a(mPV(VHI,P+4))
    a(f's_mov_b32 s41, {hex(f2u(2.0**120))}\ns_mov_b32 s42, {WS_O}\ns_mov_b32 s43, {WS_O+65536}')
    a(f'v_rcp_f32 v{MX}, v{O+12}')
    a(f'v_maximum3_f32 v5, |v{O}|, |v{O+1}|, |v{O+2}|')
    for x in range(5): a(f'v_maximum3_f32 v5, v5, |v{O+3+2*x}|, |v{O+4+2*x}|')
    a(f"""
    v_cmp_ngt_f32 vcc, s41, v5
    s_cmp_lg_u32 s39, 0
    s_cbranch_scc1 K2_FIN
    s_cbranch_vccz K2_FIN
    s_mov_b32 s39, 1
    s_branch K2_RESTART
    K2_FIN:
    """)
    for x in range(6): a(f'v_pk_mul_f32 {vr(O+2*x,2)}, {vr(O+2*x,2)}, {vr(MX,2)} op_sel_hi:[1,0]')
    for x in range(6): a(f'v_cvt_pk_bf16_f32 v{P+x}, v{O+2*x}, v{O+2*x+1}')
    a(f'buffer_store_dwordx4 {vr(P,4)}, v124, s[20:23], s42 offen')
    a(f'buffer_store_dwordx2 {vr(P+4,2)}, v125, s[20:23], s43 offen')
    stamp(a,2)
    stamp_store(a,1,3,20,'s6')
    a('s_endpgm')

    GF=16; WF=80; AC=144
    a('K2_A2:')
    a(f"""
    s_lshr_b32 s3, s2, 3
    s_mul_i32 s3, s3, 3
    s_add_u32 s3, s3, s6
    s_sub_u32 s3, s3, 8
    s_cmp_ge_u32 s3, 88
    s_cbranch_scc1 K2_END
    s_and_b32 s4, s2, 7
    s_cmp_ge_u32 s3, 44
    s_cselect_b32 s5, 8, 0
    s_cselect_b32 s7, 44, 0
    s_add_u32 s4, s4, s5
    s_sub_u32 s3, s3, s7
    s_mul_i32 s5, s3, 373
    s_lshr_b32 s5, s5, 12
    s_mul_i32 s7, s5, 11
    s_sub_u32 s3, s3, s7
    s_lshl_b32 s5, s5, 9
    s_add_u32 s5, s5, s4
    v_lshl_add_u32 v4, v1, 4, s5
    v_lshlrev_b32 v5, 12, v4
    v_lshl_add_u32 v5, v2, 4, v5
    s_movk_i32 s7, {2*GP}
    v_mul_u32_u24 v6, s7, v2
    v_lshl_add_u32 v6, v3, 4, v6
    s_mul_i32 s8, s4, {32*GP}
    s_lshl_b32 s9, s3, 9
    s_add_u32 s8, s8, s9
    s_add_u32 s8, s8, {WS_G}
    s_mov_b32 s18, {OUT_BYTES}
    s_mov_b32 s19, 0x00020000
    s_waitcnt lgkmcnt(0)
    s_barrier
    """)
    stamp(a,1)
    for m_ in range(8):
        a(f'global_load_dwordx4 {vr(WF+8*m_,4)}, v5, s[12:13] offset:{32*m_}')
        a(f'global_load_dwordx4 {vr(WF+8*m_+4,4)}, v5, s[14:15] offset:{32*m_}')
        a(f'buffer_load_dwordx4 {vr(GF+8*m_,4)}, v6, s[20:23], s8 offen')
        a(f's_add_u32 s8, s8, {GP}')
        a(f'buffer_load_dwordx4 {vr(GF+8*m_+4,4)}, v6, s[20:23], s8 offen')
        a(f's_add_u32 s8, s8, {3*GP}')
    a(f"""
    s_movk_i32 s7, 2560
    v_mul_u32_u24 v7, s7, v4
    v_sub_u32 v8, 2048, v4
    v_and_b32 v8, 2047, v8
    v_mul_u32_u24 v8, s7, v8
    s_lshl_b32 s9, s3, 6
    v_lshl_add_u32 v9, v2, 4, s9
    v_add_u32 v10, v7, v9
    v_sub_u32 v8, v8, v9
    v_add_u32 v8, {1280-16-32}, v8
    """)
    for m_ in range(8):
        a(f's_waitcnt vmcnt({4*(7-m_)})')
        a(f'v_swap_b32 v{WF+8*m_+2}, v{WF+8*m_+4}\nv_swap_b32 v{WF+8*m_+3}, v{WF+8*m_+5}')
        a(f'v_mfma_f32_32x32x16_bf16 {vr(AC,16)}, {vr(GF+8*m_,4)}, {vr(WF+8*m_,4)}, {"0" if m_==0 else vr(AC,16)}')
        a(f'v_mfma_f32_32x32x16_bf16 {vr(AC,16)}, {vr(GF+8*m_+4,4)}, {vr(WF+8*m_+4,4)}, {vr(AC,16)}')
    a('s_cmp_eq_u32 s3, 10\ns_cbranch_scc1 K2_A2_COL0')
    for x in range(8): a(f'v_cvt_pk_bf16_f32 v{16+x}, v{AC+2*x}, v{AC+2*x+1}')
    for jj in range(2):
        for x in range(4): a(f'v_cvt_pk_bf16_f32 v{24+4*jj+x}, v{AC+8*jj+7-2*x}, v{AC+8*jj+6-2*x}')
    a(f"""
    buffer_store_dwordx4 v[16:19], v10, s[16:19], 0 offen offset:2
    buffer_store_dwordx4 v[24:27], v8, s[16:19], 0 offen offset:32
    buffer_store_dwordx4 v[28:31], v8, s[16:19], 0 offen
    s_cmp_eq_u32 s3, 9
    s_cbranch_scc0 K2_A2_LAST
    s_mov_b32 exec_lo, 0
    buffer_store_dwordx3 v[20:22], v10, s[16:19], 0 offen offset:34
    buffer_store_short v23, v10, s[16:19], 0 offen offset:46
    s_mov_b32 exec_lo, -1
    s_mov_b32 exec_hi, 0
    K2_A2_LAST:
    buffer_store_dwordx4 v[20:23], v10, s[16:19], 0 offen offset:34
    """)
    stamp(a,2)
    stamp_store(a,1,3,20,'s6')
    a('s_endpgm')
    a('K2_A2_COL0:')
    a(f"""
    s_nop 10
    v_cvt_pk_bf16_f32 v16, v{AC}, v{AC}
    s_mov_b32 exec_lo, -1
    s_mov_b32 exec_hi, 0
    buffer_store_short v16, v7, s[16:19], 0 offen
    """)
    stamp(a,2)
    stamp_store(a,1,3,20,'s6')
    a('K2_END:')
    a('s_endpgm')
    return 160

K3_LDS = 102400
K3_M = [4,7,10,13,16,19,22,25]
K3_LOOK = 9
def gen_k3(a):
    header(a, 'k3_kernel')
    if OPT.stamps: a('s_memrealtime s[56:57]')
    stamp(a,0)
    a(f"""
    s_cmp_ge_u32 s2, 256
    s_cbranch_scc1 K3_END
    s_load_dwordx2 s[20:21], s[0:1], 80
    s_load_dwordx4 s[12:15], s[0:1], 56
    v_lshrrev_b32 v1, 6, v0
    v_and_b32 v0, 63, v0
    v_readfirstlane_b32 s6, v1
    s_and_b32 s3, s2, 7
    s_lshl_b32 s3, s3, 2
    s_bfe_u32 s4, s2, 0x20003
    s_or_b32 s3, s3, s4
    s_lshr_b32 s4, s2, 5
    s_cmp_lt_u32 s6, 4
    s_cbranch_scc1 K3_COMPUTE
    s_sub_u32 s7, s6, 4
    s_lshl_b32 s8, s7, 6
    v_add_u32 v1, s8, v0
    s_movk_i32 s9, 6554
    s_movk_i32 s10, 1120
    s_mul_i32 s11, s4, 160
    """)
    for i in range(5):
        a(f"""
        v_add_u32 v2, {256*i}, v1
        v_mul_u32_u24 v3, s9, v2
        v_lshrrev_b32 v3, 16, v3
        v_lshl_add_u32 v2, v2, 4, s11
        v_mad_u32_u24 v{8+i}, v3, s10, v2
        """)
    a('s_lshl_b32 m0, s7, 10\ns_waitcnt lgkmcnt(0)')
    issued=0
    for b,mneed in enumerate(K3_M):
        upto=min(25,mneed+K3_LOOK)
        while issued<upto:
            a(f'global_load_lds_dwordx4 v{8+issued%5}, s[12:13]')
            issued+=1
            if issued<25:
                a('s_add_u32 m0, m0, 4096')
                if issued%5==0: a(f's_add_u32 s12, s12, {128*1280}\ns_addc_u32 s13, s13, 0')
        a(f's_waitcnt vmcnt({issued-mneed})\ns_barrier')
    stamp_store(a,2,1,20,'s6')
    a('s_endpgm')
    OF=16; WB=[96,116]; AC=136
    a('K3_COMPUTE:')
    a(f"""
    s_mov_b32 s22, {WS_SIZE}
    s_mov_b32 s23, 0x00020000
    v_and_b32 v1, 15, v0
    v_lshrrev_b32 v2, 4, v0
    v_and_b32 v3, 1, v2
    v_lshrrev_b32 v4, 1, v2
    s_lshl_b32 s7, s3, 6
    s_lshl_b32 s8, s6, 4
    s_add_u32 s7, s7, s8
    v_add_u32 v5, s7, v1
    s_mov_b32 s8, {HEAD}
    v_mul_u32_u24 v6, s8, v4
    v_lshl_add_u32 v6, v3, 15, v6
    v_lshl_add_u32 v8, v5, 4, v6
    v_lshl_add_u32 v6, v2, 1, v3
    v_mul_u32_u24 v7, s8, v6
    v_lshl_add_u32 v9, v5, 3, v7
    v_xor_b32 v14, 1, v6
    v_mul_u32_u24 v7, s8, v14
    v_lshl_add_u32 v10, v5, 3, v7
    s_mov_b32 s9, {WS_O}
    s_mov_b32 s10, {WS_O+65536}
    s_waitcnt lgkmcnt(0)
    """)
    steps=[]
    for P_ in range(4):
        steps += [('F',4*P_+x) for x in range(4)] + [('P',P_)]
    def oload(si):
        kind,n=steps[si]
        d=OF+4*si
        if kind=='F':
            return [f'buffer_load_dwordx4 {vr(d,4)}, v8, s[20:23], s9 offen', f's_add_u32 s9, s9, {2*HEAD}'], 1
        return [f'buffer_load_dwordx2 {vr(d,2)}, v9, s[20:23], s10 offen', f'buffer_load_dwordx2 {vr(d+2,2)}, v10, s[20:23], s10 offen', f's_add_u32 s10, s10, {8*HEAD}'], 2
    cnt=[oload(i)[1] for i in range(20)]
    PRE=10
    for si in range(PRE):
        for t in oload(si)[0]: a(t)
    a(f"""
    v_lshrrev_b32 v7, 2, v1
    v_and_b32 v15, 3, v1
    v_lshlrev_b32 v15, 3, v15
    s_movk_i32 s8, 160
    v_mad_u32_u24 v15, v7, s8, v15
    v_mul_u32_u24 v11, 20, v4
    v_mad_u32_u24 v12, v3, 4, v11
    v_add_u32 v12, 4, v12
    v_mad_u32_u24 v11, v3, 12, v11
    v_mad_u32_u24 v11, v11, s8, v15
    v_mad_u32_u24 v12, v12, s8, v15
    s_movk_i32 s8, 3200
    v_mad_u32_u24 v13, v6, s8, v15
    v_mad_u32_u24 v14, v14, s8, v15
    s_movk_i32 s8, 2560
    v_mul_u32_u24 v5, s8, v5
    v_lshl_add_u32 v5, v2, 3, v5
    s_mul_i32 s8, s4, 160
    s_add_u32 s8, s8, 1280
    s_mov_b32 s16, s14
    s_mov_b32 s17, s15
    s_mov_b32 s18, {OUT_BYTES}
    s_mov_b32 s19, 0x00020000
    """)
    def wreads(si):
        kind,n=steps[si]; st=si&1; L=[]
        if kind=='F': base=(n%8)*6400; r0,r1=11,12
        else: base=(n%2)*25600+2560; r0,r1=13,14
        for j in range(5):
            L.append(f'ds_read_b64_tr_b16 {vr(WB[st]+4*j,2)}, v{r0} offset:{base+32*j}')
            L.append(f'ds_read_b64_tr_b16 {vr(WB[st]+4*j+2,2)}, v{r1} offset:{base+32*j}')
        return L
    bar_before={0,2,5,7,10,12,15,17}
    nissued=PRE
    a('s_barrier')
    stamp(a,1)
    for t in wreads(0): a(t)
    for si in range(20):
        fill=[]
        if si+1<20:
            if si+1==10:
                for r in (11,12,13,14): a(f'v_add_u32 v{r}, 51200, v{r}')
            fill+=wreads(si+1)
        extra=[]
        if nissued<20:
            extra=oload(nissued)[0]; nissued+=1
        outstanding=sum(cnt[si+1:nissued - (1 if extra else 0)])
        a(f's_waitcnt vmcnt({outstanding}) lgkmcnt(0)')
        if si+1 in bar_before: a('s_barrier')
        m=[f'v_mfma_f32_16x16x32_bf16 {vr(AC+4*j,4)}, {vr(WB[si&1]+4*j,4)}, {vr(OF+4*si,4)}, {"0" if si==0 else vr(AC+4*j,4)}' for j in range(5)]
        for t in interleave(m, fill, 0, 2): a(t)
        for t in extra: a(t)
    stamp(a,2)
    for j in range(5):
        a(f'v_cvt_pk_bf16_f32 v{16+2*j}, v{AC+4*j}, v{AC+4*j+1}\nv_cvt_pk_bf16_f32 v{17+2*j}, v{AC+4*j+2}, v{AC+4*j+3}')
        a(f'buffer_store_dwordx2 {vr(16+2*j,2)}, v5, s[16:19], s8 offen offset:{32*j}')
    stamp_store(a,2,3,20,'s6')
    a('K3_END:')
    a('s_endpgm')
    return 160

HDR = open('concat_heads__spectral_fnet__sliding_block__prompt.s.ref').read().split('; Override launch')[0]

def build(kernels):
    a=Asm()
    launches=[]; descs=[]
    for name,fn,grid,block,lds in kernels:
        nv=fn(a)
        launches.append(f'; @launch kernel={name} grid=({grid},1,1) block=({block},1,1) lds={lds}')
        descs.append(descriptor(name,nv))
    s = HDR + '\n'.join(launches) + '\n.amdgcn_target "amdgcn-amd-amdhsa--gfx950"\n.text\n' + a.text() + '.section .rodata,"a"\n' + ''.join(descs)
    return s

if __name__=='__main__':
    out=sys.argv[1]
    OPT.stamps = 'stamps' in sys.argv[2:]
    ks=[('k1_kernel',gen_k1,256,512,K1_LDS),('k2_kernel',gen_k2,256,704,K2_LDS),('k3_kernel',gen_k3,256,512,K3_LDS)]
    open(out,'w').write(build(ks))
```

```python
import sys, math, struct
sys.path.insert(0,'scratch')
from asmlib import *

KN = 'concat_heads__spectral_fnet__sliding_block__prompt_kernel'
PL = 16640
WS_G = 480*PL
GP = 1408
G_BYTES = 16*128*GP
WS_F = 12<<20
WS_STAMP = 32<<20
WS_SIZE = 268435456
OUT_BYTES = 2048*1280*2
L_K = 0
L_V = 20480
VP = 4128
L_ONES = L_V + 5*VP
L_W2 = L_ONES + 2304
L_SYNC = L_W2 + 16384
L_BIG = L_SYNC + 96
L_XR = L_BIG
L_WR = L_BIG + 49152
L_XA = L_BIG + 73728
LDS_BYTES = L_BIG + 102400
assert L_BIG % 256 == 0 and LDS_BYTES <= 163840

def f2u(x): return struct.unpack('<I', struct.pack('<f', x))[0]
def fh(x): return hex(f2u(x))
QSCALE = (20**-0.5) * math.log2(math.e)
SHIFT_C = 32.0
SPIN = 200000

class Opt:
    stamps = False
    sigma = 5
    fa_step = 32
    xa_stage = 10
    def __getattr__(self, k): return None
OPT = Opt()

a = Asm()
_uid = [0]
def lab(p):
    _uid[0] += 1
    return f'{p}_{_uid[0]}'

def stamp(i):
    if OPT.stamps:
        a(f's_memtime s[52:53]\ns_waitcnt lgkmcnt(0)\nv_writelane_b32 v255, s52, {i+2}')

def finish():
    if OPT.stamps:
        a('s_mov_b64 exec, -1\ns_waitcnt vmcnt(0)')
        stamp(13)
        a('s_memrealtime s[52:53]\ns_waitcnt lgkmcnt(0)\nv_writelane_b32 v255, s52, 1')
        a(f's_lshl_b32 s54, s2, 4\ns_add_u32 s54, s54, s6\ns_lshl_b32 s54, s54, 6\ns_add_u32 s54, s54, {WS_STAMP}')
        a('v_lshlrev_b32 v254, 2, v0\ns_mov_b64 exec, 0xffff\nbuffer_store_dword v255, v254, s[24:27], s54 offen\ns_waitcnt vmcnt(0)')
    a('s_endpgm')

def spin(load, check, preissued=False, vm=0):
    L = lab('SP'); C = lab('SC'); D = lab('SD')
    a(f's_mov_b32 s50, {SPIN}')
    if preissued:
        a(f's_waitcnt vmcnt({vm})\ns_branch {C}')
    a(f'{L}:')
    a(load)
    a('s_waitcnt vmcnt(0)')
    a(f'{C}:')
    a(check)
    a(f's_sub_u32 s50, s50, 1\ns_cbranch_scc1 {D}\ns_cbranch_vccnz {L}\n{D}:')

def pub_load(vt, va): return f'global_load_dword v{vt}, v{va}, s[20:21] sc1'
def pub_check(vt, va, preissued, vm=0):
    spin(pub_load(vt, va), f'v_and_b32 v{vt+1}, 0x80808080, v{vt}\nv_cmp_ne_u32 vcc, 0x80808080, v{vt+1}', preissued, vm)
    a(f"""
    s_getreg_b32 s48, hwreg(HW_REG_XCC_ID, 0, 4)
    s_or_b32 s48, s48, 0x80
    s_mul_i32 s48, s48, 0x01010101
    v_cmp_ne_u32 vcc, s48, v{vt}
    s_lshl_b32 s48, s3, 3
    s_nop 0
    s_lshr_b64 s[48:49], vcc, s48
    s_and_b32 s48, s48, 0xff
    s_cselect_b32 s32, 0, {0 if OPT.slow else 1}
    """)

Q1=216; Q2=220; KA=224; KB=232; MK=240
VK1=248; VK2=249; VV=250; VO1=251; VO2=252; VL16=253
MS=64

def attn_setup(T):
    i,hh,p,t0,t1,t2 = T,T+1,T+2,T+3,T+4,T+5
    a(f"""
    v_lshlrev_b32 v{VL16}, 4, v0
    v_and_b32 v{i}, 31, v0
    v_lshrrev_b32 v{hh}, 5, v0
    v_and_b32 v{p}, 0x13, v{i}
    v_and_b32 v{t0}, 4, v{i}
    v_lshl_or_b32 v{p}, v{t0}, 1, v{p}
    v_bfe_u32 v{t0}, v{i}, 3, 1
    v_lshl_or_b32 v{p}, v{t0}, 2, v{p}
    s_lshl_b32 s48, s6, 8
    v_lshl_add_u32 v{p}, v{p}, 3, s48
    v_lshl_add_u32 v{VK1}, v{hh}, 13, v{p}
    v_add_u32 v{VK2}, 16384, v{p}
    v_and_b32 v{t0}, 3, v0
    v_bfe_u32 v{t1}, v0, 4, 1
    v_lshl_or_b32 v{t0}, v{t1}, 2, v{t0}
    v_lshlrev_b32 v{t0}, 2, v{t0}
    s_mov_b32 s49, 0x55542130
    v_lshrrev_b32 v{t0}, v{t0}, s49
    v_and_b32 v{t0}, 7, v{t0}
    v_cmp_gt_u32 vcc, 5, v{t0}
    v_mov_b32 v{t1}, s48
    s_movk_i32 s49, {VP}
    v_cndmask_b32 v{t1}, 0, v{t1}, vcc
    v_mad_u32_u24 v{t0}, v{t0}, s49, v{t1}
    v_bfe_u32 v{t1}, v0, 2, 2
    v_lshl_add_u32 v{t1}, v{hh}, 3, v{t1}
    v_lshl_add_u32 v{t0}, v{t1}, 3, v{t0}
    v_add_u32 v{VV}, {L_V}, v{t0}
    s_mul_i32 s49, s4, {5*PL}
    s_lshl_b32 s51, s3, 11
    s_add_u32 s49, s49, s51
    s_add_u32 s49, s49, s48
    v_lshrrev_b32 v{t0}, 4, v0
    s_movk_i32 s48, {PL}
    v_mul_u32_u24 v{t0}, s48, v{t0}
    v_and_b32 v{t1}, 15, v0
    v_lshl_add_u32 v{t0}, v{t1}, 4, v{t0}
    v_add_u32 v{VO1}, s49, v{t0}
    v_lshlrev_b32 v{t0}, 30, v{hh}
    v_lshl_add_u32 v{t0}, v{i}, 3, v{t0}
    s_add_u32 s49, s49, {4*PL}
    v_add_u32 v{VO2}, s49, v{t0}
    v_cmp_gt_u32 vcc, 32, v0
    v_mov_b32 v{t0}, 0x3f803f80
    v_mov_b32 v{t1}, 0x00003f80
    v_cndmask_b32 v{KA+6}, 0, v{t0}, vcc
    v_cndmask_b32 v{KA+7}, 0, v{t1}, vcc
    v_cndmask_b32 v{KB+6}, 0, v{t0}, vcc
    v_cndmask_b32 v{KB+7}, 0, v{t1}, vcc
    """)
    for r in range(16):
        j0=16*(r>>3)+(r&7)
        a(f's_mov_b32 s{MS+2*r}, {hex((0xffffffff<<j0)&0xffffffff)}')
        a(f's_mov_b32 s{MS+2*r+1}, {hex((0xffffffff<<(j0+8))&0xffffffff)}')
    a(f'v_mov_b32 v{t0}, 0xffff\nv_mov_b32 v{t1}, 0xffff0000')
    for x in range(8):
        a(f"""
        v_cndmask_b32 v{MK+x}, 0, v{t0}, s[{MS+4*x}:{MS+4*x+1}]
        v_cndmask_b32 v{t2}, 0, v{t1}, s[{MS+4*x+2}:{MS+4*x+3}]
        v_or_b32 v{MK+x}, v{MK+x}, v{t2}
        """)

def srds():
    a(f"""
    s_mov_b32 s24, s22
    s_mov_b32 s25, s23
    s_mov_b32 s26, {WS_SIZE}
    s_mov_b32 s27, 0x00020000
    s_mov_b32 s28, s18
    s_mov_b32 s29, s19
    s_mov_b32 s30, {OUT_BYTES}
    s_mov_b32 s31, 0x00020000
    """)

def gen_entry():
    a(f'.globl {KN}\n.p2align 8\n.type {KN},@function\n{KN}:')
    if OPT.stamps:
        a('s_memrealtime s[54:55]\ns_memtime s[52:53]\nv_mov_b32 v255, -1')
    a("""
    s_cmp_ge_u32 s2, 256
    s_cbranch_scc1 END
    s_load_dwordx8 s[12:19], s[0:1], 40
    s_load_dwordx4 s[20:23], s[0:1], 72
    s_load_dwordx2 s[8:9], s[0:1], 0
    v_lshrrev_b32 v1, 6, v0
    s_and_b32 s3, s2, 7
    v_readfirstlane_b32 s6, v1
    s_lshr_b32 s4, s2, 3
    s_lshl_b32 s5, s3, 5
    s_add_u32 s5, s5, s4
    v_and_b32 v0, 63, v0
    s_and_b32 s7, s6, 3
    s_and_b32 s10, s4, 1
    s_lshr_b32 s11, s4, 1
    s_cmp_lt_u32 s6, 4
    s_cbranch_scc1 C_ROLE
    """)

def stamp0():
    if OPT.stamps: a('v_writelane_b32 v255, s54, 0\nv_writelane_b32 v255, s52, 2')

WA=16; XF=96; HS=[128,148,168]; RC=188; FF=194; SG=200; TT=201
def wa(ks,t): return WA+(ks*5+t)*4

def gen_L():
    a("""
    s_setprio 2
    v_lshrrev_b32 v1, 3, v0
    v_and_b32 v2, 7, v0
    v_lshrrev_b32 v3, 1, v1
    v_xor_b32 v3, v2, v3
    v_lshlrev_b32 v3, 4, v3
    s_lshl_b32 s33, s3, 8
    s_lshl_b32 s34, s10, 7
    s_add_u32 s33, s33, s34
    s_lshl_b32 s34, s7, 5
    s_add_u32 s33, s33, s34
    v_lshl_add_u32 v4, v1, 1, s33
    s_movk_i32 s34, 1280
    v_mad_u32_u24 v4, v4, s34, v3
    v_xor_b32 v5, 64, v4
    v_add_u32 v5, 16*1280, v5
    v_add_u32 v6, 1280, v4
    v_add_u32 v7, 1280, v5
    v_and_b32 v8, 2, v1
    v_xor_b32 v8, v2, v8
    v_lshlrev_b32 v8, 4, v8
    s_lshl_b32 s35, s7, 4
    v_add_u32 v9, s35, v1
    s_movk_i32 s35, 3840
    v_mad_u32_u24 v8, v9, s35, v8
    v_xor_b32 v9, 64, v8
    v_add_u32 v9, 8*3840, v9
    s_mul_i32 s44, s3, 5
    s_lshr_b32 s44, s44, 2
    s_add_u32 s44, s44, s11
    s_lshl_b32 s35, s10, 1
    s_add_u32 s44, s44, s35
    s_sub_u32 s35, s44, 10
    s_cselect_b32 s44, s44, s35
    s_sub_u32 s35, s44, 10
    s_cselect_b32 s44, s44, s35
    s_add_u32 s45, s11, 10
    s_lshl_b32 s45, s45, 7
    s_add_u32 s46, s11, 15
    s_cmp_lt_u32 s11, 10
    s_cselect_b32 s46, s11, s46
    s_lshl_b32 s46, s46, 7
    """)
    a(f"""
    s_lshl_b32 s47, s7, 12
    s_add_u32 s47, s47, {L_XR}
    s_lshl_b32 s33, s7, 11
    s_mov_b32 s38, 2621440
    s_mov_b32 s39, 0x00020000
    s_mov_b32 s42, 2457600
    s_mov_b32 s43, 0x00020000
    s_waitcnt lgkmcnt(0)
    s_mov_b64 s[36:37], s[12:13]
    s_mov_b64 s[40:41], s[14:15]
    """)
    stamp0()
    def adv(): a('s_add_u32 s44, s44, 1\ns_cmp_eq_u32 s44, 10\ns_cselect_b32 s44, 0, s44')
    def issue(n):
        cnt=0
        if n<10:
            a(f's_lshl_b32 s34, s44, 7\ns_mul_i32 s35, s44, {64*3840}\ns_add_u32 m0, s33, {L_WR+(n%3)*8192}\ns_add_u32 s35, s35, s45')
            a('buffer_load_dwordx4 v8, s[40:43], s35 offen lds\ns_add_u32 m0, m0, 1024')
            adv()
            a('buffer_load_dwordx4 v9, s[40:43], s35 offen lds')
            for i in range(4):
                a(f's_add_u32 m0, s47, {(n%3)*16384+i*1024}')
                a(f'buffer_load_dwordx4 v{4+i}, s[36:39], s34 offen lds')
            cnt=6
        else:
            for h in range(2):
                a(f's_mul_i32 s35, s44, {64*3840}\ns_add_u32 m0, s33, {L_XR+(n%3)*16384+h*8192}\ns_add_u32 s35, s35, s46')
                a('buffer_load_dwordx4 v8, s[40:43], s35 offen lds\ns_add_u32 m0, m0, 1024')
                adv()
                a('buffer_load_dwordx4 v9, s[40:43], s35 offen lds')
            cnt=4
        return cnt
    def xa_prep():
        a(f"""
        s_lshl_b32 s48, s3, 4
        s_add_u32 s48, s48, s11
        s_and_b32 s49, s7, 1
        s_lshl_b32 s51, s49, 10
        s_add_u32 s48, s48, s51
        v_lshl_add_u32 v10, v1, 7, s48
        s_movk_i32 s48, 1280
        v_mad_u32_u24 v10, v10, s48, v3
        s_lshl_b32 s48, s49, 6
        v_xor_b32 v10, s48, v10
        s_lshr_b32 s48, s7, 1
        s_mul_i32 s49, s48, 640
        v_add_u32 v10, s49, v10
        s_mul_i32 s48, s48, 10240
        s_add_u32 s62, s48, s51
        """)
    def xa_issue():
        for m in range(5):
            a(f's_add_u32 m0, s62, {L_XA+m*2048-m*128}')
            a(f'global_load_lds_dwordx4 v10, s[8:9] offset:{m*128}')
        return 5
    E0,E1,EM,B0,B1,BM = 202,203,204,205,206,207
    def gen_prep():
        a(f"""
        s_mul_i32 s48, s10, 160
        s_mul_i32 s49, s7, 40
        s_add_u32 s48, s48, s49
        s_add_u32 s48, s48, 1
        v_and_b32 v11, 15, v0
        v_lshrrev_b32 v12, 4, v0
        v_add_u32 v13, s48, v11
        v_cvt_f32_u32 v{E0}, v13
        v_add_f32 v{E1}, 0x41800000, v{E0}
        v_and_b32 v14, 7, v11
        v_add3_u32 v14, v14, s48, 32
        v_cvt_f32_u32 v{EM}, v14
        v_mul_f32 v208, {fh(0.2)}, v{E0}
        v_mul_f32 v209, {fh(0.2)}, v{E1}
        v_mul_f32 v210, {fh(0.2)}, v{EM}
        v_cos_f32 v{RC}, v208
        v_sin_f32 v{RC+1}, v208
        v_cos_f32 v{RC+2}, v209
        v_sin_f32 v{RC+3}, v209
        v_cos_f32 v{RC+4}, v210
        v_sin_f32 v{RC+5}, v210
        v_cmp_le_u32 vcc, 8, v11
        v_mov_b32 v208, 0x80008000
        v_mov_b32 v209, {fh(-0.25)}
        v_cndmask_b32 v{SG}, 0, v208, vcc
        v_cndmask_b32 v{BM}, 0, v209, vcc
        v_cndmask_b32 v{RC+5}, -v{RC+5}, v{RC+5}, vcc
        v_cmp_ne_u32 vcc, 296, v13
        v_lshlrev_b32 v208, 3, v12
        v_cvt_f32_u32 v208, v208
        v_cndmask_b32 v{EM}, 0, v{EM}, vcc
        v_cndmask_b32 v{BM}, 0, v{BM}, vcc
        v_mul_f32 v{E0}, {fh(1/640)}, v{E0}
        v_mul_f32 v{E1}, {fh(1/640)}, v{E1}
        v_mul_f32 v{EM}, {fh(1/640)}, v{EM}
        v_mul_f32 v{B0}, v208, v{E0}
        v_mul_f32 v{B1}, v208, v{E1}
        v_fmac_f32 v{BM}, v208, v{EM}
        """)
    def gen_ks(ks):
        for p,(E,B) in enumerate(((E0,B0),(E1,B1))):
            for x2 in range(4):
                a(f"""
                v_fmamk_f32 v208, v{E}, {fh(32*ks+2*x2)}, v{B}
                v_fmamk_f32 v209, v{E}, {fh(32*ks+2*x2+1)}, v{B}
                v_cos_f32 v210, v208
                v_cos_f32 v211, v209
                v_sin_f32 v212, v208
                v_sin_f32 v213, v209
                v_cvt_pk_bf16_f32 v{wa(ks,2*p)+x2}, v210, v211
                v_cvt_pk_bf16_f32 v{wa(ks,2*p+1)+x2}, v212, v213
                """)
        for x4 in range(2):
            for y in range(4): a(f'v_fmamk_f32 v{208+y}, v{EM}, {fh(32*ks+4*x4+y)}, v{BM}')
            for y in range(4): a(f'v_cos_f32 v{208+y}, v{208+y}')
            a(f'v_cvt_pk_bf16_f32 v{wa(ks,4)+2*x4}, v208, v209\nv_cvt_pk_bf16_f32 v{wa(ks,4)+2*x4+1}, v210, v211')
    def gen_F():
        a(f"""
        s_lshl_b32 s48, s3, 4
        s_add_u32 s48, s48, s11
        v_lshl_add_u32 v208, v12, 9, s48
        v_mul_u32_u24 v208, v208, v11
        v_cvt_f32_u32 v208, v208
        v_mul_f32 v208, {fh(1/2048)}, v208
        v_cvt_f32_u32 v209, v11
        """)
        for x2 in range(2):
            a(f"""
            v_fmamk_f32 v210, v209, {fh((2*x2)/16)}, v208
            v_fmamk_f32 v211, v209, {fh((2*x2+1)/16)}, v208
            v_cos_f32 v212, v210
            v_cos_f32 v213, v211
            v_sin_f32 v210, v210
            v_sin_f32 v211, v211
            v_cvt_pk_bf16_f32 v{FF+2+x2}, v212, v213
            v_cvt_pk_bf16_f32 v{FF+x2}, v210, v211
            """)
        a(f'v_xor_b32 v{FF+4}, 0x80008000, v{FF}\nv_xor_b32 v{FF+5}, 0x80008000, v{FF+1}')
    def kv_prep():
        a(f"""
        s_sub_u32 s48, s3, 1
        s_cselect_b32 s48, 0, s48
        s_cmp_lt_u32 s7, 2
        s_cselect_b32 s48, s48, s3
        s_and_b32 s49, s7, 1
        s_lshl_b32 s60, s48, 11
        s_lshl_b32 s51, s49, 10
        s_add_u32 s60, s60, s51
        s_mul_i32 s51, s4, {5*PL}
        s_add_u32 s60, s60, s51
        s_add_u32 s61, s60, {320*PL}
        s_add_u32 s60, s60, {160*PL}
        s_lshl_b32 s48, s48, 5
        s_add_u32 s48, s48, s49
        s_mul_i32 s49, s4, 5
        v_and_b32 v13, 4, v0
        v_add_u32 v13, s49, v13
        v_lshrrev_b32 v13, 4, v13
        v_lshl_add_u32 v13, v13, 1, s48
        s_movk_i32 s49, 384
        v_and_b32 v14, 3, v0
        v_lshlrev_b32 v14, 2, v14
        v_mad_u32_u24 v14, v13, s49, v14
        v_add_u32 v14, {WS_F}, v14
        s_movk_i32 s49, {20*384}
        s_cmp_lt_u32 s4, 16
        s_cselect_b32 s49, s49, {10*384+128}
        v_add_u32 v15, s49, v14
        v_lshlrev_b32 v13, 2, v0
        """)
    extras = {0:[lambda: gen_ks(2)], 1:[lambda: gen_ks(3)], 2:[gen_F], 3:[xa_prep, kv_prep], 4:[lambda: attn_setup(208)]}
    a('s_cmp_ge_u32 s4, 30\ns_cbranch_scc1 L_SPARE')
    cnt=[]
    cnt.append(issue(0)); cnt.append(issue(1))
    srds()
    gen_prep(); gen_ks(0); gen_ks(1)
    for n in range(15):
        a(f's_waitcnt vmcnt({sum(cnt[n+1:])})')
        a('s_barrier')
        if n in (0,9,14): stamp({0:1,9:2,14:3}[n])
        if n+2<15:
            c=issue(n+2)
            if n+2==OPT.xa_stage: c+=xa_issue()
            if n+2==14:
                a(pub_load(208,13)); c+=1
            cnt.append(c)
        for f in extras.get(n,[]): f()
    a('s_branch L_A1')
    a('L_SPARE:')
    srds()
    xa_prep(); xa_issue()
    gen_prep()
    for ks in range(4): gen_ks(ks)
    gen_F(); kv_prep(); attn_setup(208)
    a(pub_load(208,13))
    a('s_waitcnt vmcnt(0)\ns_barrier')
    a('L_A1:')
    a('s_setprio 0')
    pub_check(208,13,True)
    a(f"""
    buffer_load_dword v208, v14, s[24:27], 0 offen sc1
    v_lshrrev_b32 v4, 1, v11
    v_xor_b32 v4, v4, v12
    v_lshlrev_b32 v4, 4, v4
    v_lshl_add_u32 v4, v11, 7, v4
    v_add_u32 v4, {L_XA}, v4
    v_xor_b32 v5, 64, v4
    """)
    def xreads(blk):
        q=4-blk
        return [f'ds_read_b128 {vr(XF+16*(blk&1)+4*ks,4)}, v{4+(ks&1)} offset:{(2*q+(ks>>1))*2048}' for ks in range(4)]
    def horner(H,S):
        L=[]
        for p in range(2):
            if OPT.pkh:
                c=vr(RC+2*p,2)
                for y in range(2):
                    ha=vr(H+8*p+2*y,2); hb=vr(H+8*p+4+2*y,2); sa=vr(S+8*p+2*y,2); sb=vr(S+8*p+4+2*y,2)
                    L += [f'v_pk_fma_f32 {ha}, {sa}, {c}, {ha} op_sel_hi:[1,0,1]',
                          f'v_pk_fma_f32 {hb}, {sb}, {c}, {hb} op_sel_hi:[1,0,1]',
                          f'v_pk_fma_f32 {ha}, {sb}, {c}, {ha} op_sel:[0,1,0] op_sel_hi:[1,1,1] neg_lo:[1,0,0] neg_hi:[1,0,0]',
                          f'v_pk_fma_f32 {hb}, {sa}, {c}, {hb} op_sel:[0,1,0] op_sel_hi:[1,1,1]']
                continue
            for r in range(8): L.append(f'v_fmac_f32 v{H+8*p+r}, v{S+8*p+r}, v{RC+2*p}')
            for r in range(4): L.append(f'v_fma_f32 v{H+8*p+r}, -v{S+8*p+4+r}, v{RC+2*p+1}, v{H+8*p+r}')
            for r in range(4): L.append(f'v_fmac_f32 v{H+8*p+4+r}, v{S+8*p+r}, v{RC+2*p+1}')
        for r in range(4): L.append(f'v_fmac_f32 v{H+16+r}, v{S+16+r}, v{RC+4}')
        for r in range(4): L.append(f'v_fmac_f32_dpp v{H+16+r}, v{S+16+r}, v{RC+5} row_ror:8 row_mask:0xf bank_mask:0xf')
        return L
    for t in xreads(0): a(t)
    for blk in range(5):
        H=HS[blk%3]
        a('s_waitcnt lgkmcnt(0)')
        m=[f'v_mfma_f32_16x16x32_bf16 {vr(H+4*t,4)}, {vr(XF+16*(blk&1)+4*ks,4)}, {vr(wa(ks,t),4)}, {"0" if ks==0 else vr(H+4*t,4)}' for ks in range(4) for t in range(5)]
        fill = xreads(blk+1) if blk<4 else []
        hor = horner(HS[(blk-1)%3], HS[(blk-2)%3]) if blk>=2 else []
        seq = interleave(m[:4], fill) + interleave(m[4:], hor, 0, 2 if OPT.pkh else 3)
        for t in seq: a(t)
        if blk==1:
            spin('buffer_load_dword v208, v14, s[24:27], 0 offen sc1', 'v_cmp_ne_u32 vcc, 1, v208', True)
            a(f's_lshl_b32 s48, s7, 10')
            for dg in range(5):
                a(f's_add_u32 m0, s48, {L_K+dg*4096}')
                a(f'buffer_load_dwordx4 v{VL16}, s[24:27], s60 offen sc1 lds')
                if dg<4: a(f's_add_u32 s60, s60, {PL}')
            stamp(4)
    Z=HS[4%3]
    for t in horner(Z, HS[3%3]): a(t)
    B=XF
    for p in range(2):
        for y in range(4): a(f'v_cvt_pk_bf16_f32 v{B+4*p+y}, v{Z+8*p+2*y}, v{Z+8*p+2*y+1}')
    a(f'v_cvt_pk_bf16_f32 v{B+8}, v{Z+16}, v{Z+17}\nv_cvt_pk_bf16_f32 v{B+9}, v{Z+18}, v{Z+19}')
    G=HS[2]
    for p in range(2):
        a(f'v_mfma_f32_16x16x32_bf16 {vr(G+8*p,4)}, {vr(FF+2,4)}, {vr(B+4*p,4)}, 0')
        a(f'v_mfma_f32_16x16x32_bf16 {vr(G+8*p+4,4)}, {vr(FF,4)}, {vr(B+4*p,4)}, 0')
    a(f"""
    v_xor_b32_dpp v{B+10}, v{B+8}, v{SG} row_ror:8 row_mask:0xf bank_mask:0xf
    v_xor_b32_dpp v{B+11}, v{B+9}, v{SG} row_ror:8 row_mask:0xf bank_mask:0xf
    s_mul_i32 s48, s7, 160
    s_add_u32 s48, s48, {L_V}
    v_lshl_add_u32 v4, v12, 10, s48
    v_and_b32 v5, 7, v11
    v_lshl_add_u32 v5, v5, 2, v4
    v_bfe_u32 v6, v11, 3, 1
    v_lshl_add_u32 v5, v6, 1, v5
    v_lshl_add_u32 v4, v11, 2, v4
    s_lshl_b32 s48, s10, 2
    s_or_b32 s48, s48, s7
    s_cmp_eq_u32 s48, 7
    s_cbranch_scc0 L_NOSPEC
    v_mov_b32 v{B+12}, v{B+10}
    v_mov_b32 v{B+13}, v{B+11}
    v_xor_b32 v{B+14}, v{SG}, v{B+8}
    v_xor_b32 v{B+15}, v{SG}, v{B+9}
    s_mov_b32 exec_lo, 0x00800080
    s_mov_b32 exec_hi, 0x00800080
    v_mov_b32 v{B+10}, 0
    v_mov_b32 v{B+11}, 0
    v_mov_b32 v{B+14}, 0
    v_mov_b32 v{B+15}, 0
    s_mov_b32 exec_lo, 0x80008000
    s_mov_b32 exec_hi, 0x80008000
    v_mov_b32 v{B+8}, 0
    v_mov_b32 v{B+9}, 0
    v_mov_b32 v{B+12}, 0
    v_mov_b32 v{B+13}, 0
    s_mov_b64 exec, -1
    v_mfma_f32_16x16x32_bf16 {vr(B+16,4)}, {vr(FF+2,4)}, {vr(B+12,4)}, 0
    s_nop 7
    s_mov_b32 exec_lo, 0x80808080
    s_mov_b32 exec_hi, 0x80808080
    """)
    for r in range(4):
        a(f'v_cvt_pk_bf16_f32 v{B+20+r}, v{B+16+r}, v{B+16+r}\nds_write_b16 v5, v{B+20+r} offset:{r*VP+128+4}')
    a('s_mov_b64 exec, -1\nL_NOSPEC:')
    a(f'v_mfma_f32_16x16x32_bf16 {vr(G+16,4)}, {vr(FF+2,4)}, {vr(B+8,4)}, 0')
    for p in range(2):
        for r in range(4):
            a(f'v_cvt_pk_bf16_f32 v{B+24+r}, v{G+8*p+r}, v{G+8*p+4+r}\nds_write_b32 v4, v{B+24+r} offset:{r*VP+64*p}')
    for r in range(4):
        a(f'v_cvt_pk_bf16_f32 v{B+28+r}, v{G+16+r}, v{G+16+r}\nds_write_b16 v5, v{B+28+r} offset:{r*VP+128}')
    stamp(5)
    a(f"""
    s_lshl_b32 s48, s7, 10
    s_add_u32 s48, s48, {L_V}
    v_add_u32 v4, s48, v{VL16}
    v_and_b32 v6, 31, v0
    v_lshl_add_u32 v6, v6, 3, s48
    v_lshrrev_b32 v5, 5, v0
    v_lshl_add_u32 v5, v5, 9, v6
    s_lshl_b32 s62, s7, 9
    s_lshl_b32 s48, s3, 4
    s_add_u32 s62, s62, s48
    s_add_u32 s62, s62, s11
    s_mul_i32 s62, s62, {GP}
    s_mul_i32 s48, s10, 640
    s_add_u32 s62, s62, s48
    s_add_u32 s62, s62, {WS_G}
    s_movk_i32 s63, 0xff
    s_cmp_eq_u32 s10, 0
    s_cselect_b32 s63, s63, 0xfff
    v_mov_b32 v{Q2}, 0
    v_mov_b32 v{Q2+1}, 0
    s_waitcnt vmcnt(0) lgkmcnt(0)
    s_barrier
    """)
    stamp(6)
    a(f"""
    ds_read_b64 {vr(Q1,2)}, v5 offset:{4*VP}
    ds_read_b64 {vr(Q1+2,2)}, v5 offset:{4*VP+256}
    s_mov_b32 exec_hi, 0
    ds_read_b64 {vr(Q2,2)}, v6 offset:768
    s_mov_b32 exec_hi, s63
    """)
    for r in range(4): a(f'ds_read_b128 {vr(16+4*r,4)}, v4 offset:{r*VP}')
    for r in range(4):
        a(f's_waitcnt lgkmcnt({3-r})')
        a(f'buffer_store_dwordx4 {vr(16+4*r,4)}, v{VL16}, s[24:27], s62 offen sc1')
        if r<3: a(f's_add_u32 s62, s62, {128*GP}')
    a('s_mov_b64 exec, -1')
    a('s_branch ATTN')

def gen_C():
    X=12; ACC=172; WF=[204,220]; T=236
    a('C_ROLE:')
    a(f"""
    v_and_b32 v1, 15, v0
    v_lshrrev_b32 v2, 4, v0
    v_mov_b32 v12, 0x3f803f80
    v_mov_b32 v13, v12
    v_mov_b32 v14, v12
    v_mov_b32 v15, v12
    s_mul_i32 s33, s7, 576
    v_lshl_add_u32 v3, v0, 4, s33
    s_mov_b32 exec_hi, 0xf
    ds_write_b128 v3, v[12:15] offset:{L_ONES}
    s_mov_b64 exec, -1
    v_mov_b32 v12, 0
    v_mov_b32 v13, 0
    v_mov_b32 v3, {L_SYNC}
    ds_write_b32 v3, v12
    s_waitcnt lgkmcnt(0)
    """)
    stamp0()
    srds()
    a(f"""
    s_cmp_eq_u32 s6, 0
    s_cbranch_scc0 C_NOCLR
    s_mul_i32 s33, s5, 384
    s_add_u32 s33, s33, {WS_F}
    v_lshlrev_b32 v3, 3, v0
    s_mov_b32 exec_hi, 0xffff
    buffer_store_dwordx2 v[12:13], v3, s[24:27], s33 offen sc1
    s_mov_b64 exec, -1
    C_NOCLR:
    """)
    if not OPT.nocodepf:
        a(f"""
        s_cmp_eq_u32 s6, 1
        s_cbranch_scc0 C_NOPF
        s_getpc_b64 s[34:35]
        C_PCREF:
        s_sub_u32 s34, s34, C_PCREF-{KN}
        s_subb_u32 s35, s35, 0
        v_lshlrev_b32 v3, 5, v0
        v_add_u32 v3, s4, v3
        v_lshlrev_b32 v3, 7, v3
        v_cmp_gt_u32 vcc, END-{KN}, v3
        s_and_saveexec_b64 s[36:37], vcc
        global_load_dword v254, v3, s[34:35]
        s_mov_b64 exec, -1
        C_NOPF:
        """)
    a(f"""
    s_bfe_u32 s33, s4, 0x20002
    s_lshl_b32 s33, s33, 5
    v_and_b32 v3, 31, v0
    v_add_u32 v3, s33, v3
    v_cvt_f32_u32 v3, v3
    v_mul_f32 v3, {fh(1/128)}, v3
    v_lshrrev_b32 v4, 5, v0
    s_lshl_b32 s33, s7, 5
    v_lshl_add_u32 v4, v4, 2, s33
    v_cvt_f32_u32 v4, v4
    v_mul_f32 v4, v3, v4
    s_lshl_b32 s33, s7, 12
    v_lshl_add_u32 v5, v0, 4, s33
    """)
    for k in range(4):
        for x in range(4): a(f'v_fmamk_f32 v{20+x}, v3, {fh(8*k+x)}, v4')
        for x in range(4): a(f'v_cos_f32 v{24+x}, v{20+x}\nv_sin_f32 v{20+x}, v{20+x}')
        for x in range(4): a(f'v_cvt_pk_bf16_f32 v{28+4*(k&1)+x}, v{24+x}, -v{20+x}')
        a(f'ds_write_b128 v5, {vr(28+4*(k&1),4)} offset:{L_W2+k*1024}')
    a(f"""
    s_cmp_eq_u32 s6, 0
    s_cbranch_scc0 C_NOPUB
    s_getreg_b32 s33, hwreg(HW_REG_XCC_ID, 0, 4)
    s_or_b32 s33, s33, 0x80
    s_and_b32 s34, s5, 3
    s_lshl_b32 s34, s34, 3
    s_lshl_b32 s33, s33, s34
    s_and_b32 s34, s5, 0xfc
    v_mov_b32 v3, s34
    v_mov_b32 v4, s33
    s_waitcnt vmcnt(0)
    s_mov_b64 exec, 1
    global_atomic_or v3, v4, s[20:21] sc1
    s_mov_b64 exec, -1
    C_NOPUB:
    v_lshlrev_b32 v11, 2, v0
    s_cmp_ge_u32 s4, 30
    s_cbranch_scc1 C_SPARE
    """)
    a(f"""
    v_lshrrev_b32 v3, 1, v1
    v_xor_b32 v3, v3, v2
    v_lshlrev_b32 v3, 4, v3
    v_lshl_add_u32 v3, v1, 7, v3
    s_lshl_b32 s33, s7, 12
    s_add_u32 s33, s33, {L_XR}
    v_add_u32 v4, s33, v3
    v_xor_b32 v5, 64, v4
    v_lshrrev_b32 v3, 2, v1
    v_lshl_add_u32 v3, v2, 3, v3
    v_lshlrev_b32 v6, 7, v3
    v_bfe_u32 v7, v1, 3, 1
    v_lshl_or_b32 v6, v7, 5, v6
    v_and_b32 v7, 1, v2
    v_lshl_or_b32 v6, v7, 6, v6
    v_and_b32 v7, 3, v1
    v_lshl_or_b32 v6, v7, 3, v6
    v_add_u32 v6, {L_WR}, v6
    v_xor_b32 v7, 32, v6
    v_xor_b32 v8, 64, v6
    v_xor_b32 v9, 0x60, v6
    s_lshl_b32 s33, s3, 11
    s_lshl_b32 s34, s10, 10
    s_add_u32 s33, s33, s34
    s_lshl_b32 s34, s7, 8
    s_add_u32 s33, s33, s34
    s_movk_i32 s34, {PL}
    v_mul_u32_u24 v10, s34, v2
    v_lshl_add_u32 v10, v1, 4, v10
    v_add_u32 v10, s33, v10
    s_add_u32 s45, s11, 10
    s_mul_i32 s45, s45, {16*PL}
    s_add_u32 s46, s11, 15
    s_cmp_lt_u32 s11, 10
    s_cselect_b32 s46, s11, s46
    s_cselect_b32 s56, {fh(QSCALE)}, 1.0
    s_cselect_b32 s58, 1, 0
    s_mov_b32 s57, s56
    s_mul_i32 s46, s46, {16*PL}
    s_mul_i32 s47, s5, 384
    s_lshl_b32 s33, s7, 2
    s_add_u32 s47, s47, s33
    s_add_u32 s47, s47, {WS_F}
    """)
    xr = lambda k,mt: X+(k*2+mt)*4
    acc = lambda mt,j: ACC+(j*2+mt)*4
    def reads(k):
        L=[]; st=k&1
        if k<20:
            n=k>>1; ks=k&1
            for mt in range(2): L.append(f'ds_read_b128 {vr(xr(k,mt),4)}, v{4+ks} offset:{(n%3)*16384+mt*2048}')
            base=(n%3)*8192+ks*4096
        else:
            n=10+((k-20)>>2); base=(n%3)*16384+((k-20)&3)*4096
        for j in range(4):
            for hf in range(2):
                L.append(f'ds_read_b64_tr_b16 {vr(WF[st]+4*j+2*hf,2)}, v{6+j} offset:{base+hf*512}')
        return L
    def needs_bar(k): return (k<20 and k%2==0) or (k>=20 and (k-20)%4==0)
    def epilogue(scale, stores):
        for j in range(4):
            if scale:
                for y in range(4): a(f'v_pk_mul_f32 {vr(ACC+8*j+2*y,2)}, {vr(ACC+8*j+2*y,2)}, s[56:57]')
            for y in range(4): a(f'v_cvt_pk_bf16_f32 v{T+4*j+y}, v{ACC+8*j+2*y}, v{ACC+8*j+2*y+1}')
            if stores: stores(j)
    a('s_waitcnt lgkmcnt(0)\ns_barrier')
    stamp(1)
    for t in reads(0): a(t)
    for k in range(40):
        a('s_waitcnt lgkmcnt(0)')
        if k+1<40 and needs_bar(k+1): a('s_barrier')
        if k+1==20:
            for j in range(4): a(f'v_subrev_u32 v{6+j}, {L_WR-L_XR}, v{6+j}')
        if k==OPT.fa_step:
            pub_check(2,11,True)
            a('v_mov_b32 v2, 1\nv_mov_b32 v3, 0\ns_mov_b64 exec, 1\nbuffer_store_dword v2, v3, s[24:27], s47 offen sc1\ns_mov_b64 exec, -1')
        m=[f'v_mfma_f32_16x16x32_bf16 {vr(acc(mt,j),4)}, {vr(WF[k&1]+4*j,4)}, {vr(xr(k%20,mt),4)}, {"0" if k%20==0 else vr(acc(mt,j),4)}' for j in range(4) for mt in range(2)]
        fill = reads(k+1) if k+1<40 else []
        seq = interleave(m[:2], fill[:4], 0, 2) + interleave(m[2:], fill[4:])
        for t in seq: a(t)
        if k==19:
            stamp(2)
            def st(j):
                a(f'buffer_store_dwordx4 {vr(T+4*j,4)}, v10, s[24:27], s45 offen sc1')
                if j<3: a(f's_add_u32 s45, s45, {4*PL}')
            epilogue(False, st)
            a(pub_load(2,11))
    stamp(3)
    epilogue(True, None)
    a(f"""
    s_add_u32 s47, s47, 128
    s_and_b32 s33, s58, s32
    s_cbranch_scc0 C_STB_SC1
    """)
    for mod,nm in (('','C_STB_PLAIN'),(' sc1','C_STB_SC1')):
        a(f'{nm}:')
        for j in range(4):
            a(f'buffer_store_dwordx4 {vr(T+4*j,4)}, v10, s[24:27], s46 offen{mod}')
            if j<3: a(f's_add_u32 s46, s46, {4*PL}')
        if mod=='': a('s_branch C_STB_DONE')
    a('C_STB_DONE:')
    a('s_nop 1')
    attn_setup(12)
    a(f"""
    s_waitcnt vmcnt(0)
    s_mov_b64 exec, 1
    s_and_b32 s33, s58, s32
    s_cbranch_scc0 C_FB_SC1
    buffer_store_dword v2, v3, s[24:27], s47 offen
    s_branch C_FB_DONE
    C_FB_SC1:
    buffer_store_dword v2, v3, s[24:27], s47 offen sc1
    C_FB_DONE:
    s_mov_b64 exec, -1
    """)
    stamp(4)
    a('s_branch C_Q')
    a('C_SPARE:')
    a(f"""
    s_lshl_b32 s33, s3, 11
    s_lshl_b32 s34, s10, 10
    s_add_u32 s33, s33, s34
    s_mul_i32 s34, s7, {40*PL}
    s_add_u32 s33, s33, s34
    v_lshrrev_b32 v3, 3, v0
    s_movk_i32 s34, {PL}
    v_mul_u32_u24 v3, s34, v3
    v_and_b32 v4, 7, v0
    v_lshl_add_u32 v3, v4, 7, v3
    """)
    for m in range(5):
        a(f'buffer_load_dword v16, v3, s[24:27], s33 offen')
        if m<4: a(f's_add_u32 s33, s33, {8*PL}')
    a('s_waitcnt vmcnt(0) lgkmcnt(0)\ns_barrier')
    stamp(1)
    pub_check(2,11,False)
    attn_setup(12)
    a('C_Q:')
    a(f"""
    s_mul_i32 s33, s4, 5
    v_and_b32 v4, 2, v0
    v_lshl_add_u32 v4, v4, 1, s33
    v_lshrrev_b32 v4, 4, v4
    v_and_b32 v5, 1, v0
    v_lshl_add_u32 v4, v4, 1, v5
    s_movk_i32 s33, 384
    v_mul_u32_u24 v4, s33, v4
    s_mul_i32 s33, s3, {32*384}
    s_lshl_b32 s34, s7, 2
    s_add_u32 s33, s33, s34
    s_add_u32 s33, s33, {WS_F+128}
    v_add_u32 v4, s33, v4
    v_lshrrev_b32 v5, 5, v0
    s_mov_b32 s33, {2*PL}
    v_mul_u32_u24 v5, s33, v5
    v_and_b32 v6, 0x3fffffff, v{VO2}
    v_subrev_u32 v6, {4*PL}, v6
    v_add_u32 v5, v5, v6
    s_movk_i32 s34, {PL}
    s_lshl_b32 s35, s7, 10
    s_movk_i32 s36, 1024
    s_mov_b32 s37, {4*PL+1024}
    """)
    spin('buffer_load_dword v6, v4, s[24:27], 0 offen sc1', 'v_cmp_ne_u32 vcc, 1, v6')
    stamp(5)
    a(f"""
    s_add_u32 m0, s35, {L_V+4*VP}
    buffer_load_dwordx2 {vr(Q1,2)}, v5, s[24:27], 0 offen sc1
    buffer_load_dwordx4 v{VO1}, s[24:27], s36 offen sc1 lds
    buffer_load_dwordx2 {vr(Q1+2,2)}, v5, s[24:27], s34 offen sc1
    s_add_u32 m0, s35, {L_V+768}
    buffer_load_dwordx2 {vr(Q2,2)}, v{VO2}, s[24:27], 0 offen sc1
    s_mov_b64 exec, 0xffff
    buffer_load_dwordx4 v{VO1}, s[24:27], s37 offen sc1 lds
    s_mov_b64 exec, -1
    """)
    a(f"""
    s_lshl_b32 s33, s7, 6
    v_add_u32 v9, s33, v0
    s_movk_i32 s33, 6554
    s_movk_i32 s34, 1120
    s_lshr_b32 s41, s4, 2
    s_mul_i32 s41, s41, 160
    """)
    for i in range(5):
        a(f"""
        v_add_u32 v10, {256*i}, v9
        v_mul_u32_u24 v11, s33, v10
        v_lshrrev_b32 v11, 16, v11
        v_lshl_add_u32 v10, v10, 4, s41
        v_mad_u32_u24 v{4+i}, v11, s34, v10
        """)
    a(f"""
    s_mov_b64 s[36:37], s[16:17]
    s_mov_b32 s38, 819200
    s_mov_b32 s39, 0x00020000
    s_and_b32 s40, s4, 3
    s_add_u32 s40, s40, s3
    s_sub_u32 s33, s40, 5
    s_cselect_b32 s40, s40, s33
    s_sub_u32 s33, s40, 5
    s_cselect_b32 s40, s40, s33
    s_add_u32 s35, s35, {L_BIG}
    s_waitcnt vmcnt(0)
    s_barrier
    """)
    stamp(6)

def gen_attn():
    VF=32; SA=48; SB=64; O=80; MX=96; PB=100
    sg=OPT.sigma
    def Pb(name): return PB+8*{'M8':0,'M0':1,7:2,6:3,5:4,4:5,3:6,2:7,1:8}[name]
    def rdK(dst,t): return [f'ds_read_b64 {vr(dst,2)}, v{VK1} offset:{t*256}', f'ds_read_b64 {vr(dst+2,2)}, v{VK1} offset:{t*256+4096}', f'ds_read_b64 {vr(dst+4,2)}, v{VK2} offset:{t*256}']
    def mS1(S,K): return f'v_mfma_f32_32x32x16_bf16 {vr(S,16)}, {vr(K,4)}, {vr(Q1,4)}, 0'
    def mS2(S,K): return f'v_mfma_f32_32x32x16_bf16 {vr(S,16)}, {vr(K+4,4)}, {vr(Q2,4)}, {vr(S,16)}'
    jobs=[(n,jj) for n in ['M8','M0',7,6,5,4,3,2,1] for jj in range(2)]
    def tile_of(n): return {'M8':8,'M0':0}.get(n,n)
    def rdV(ji):
        n,jj=jobs[ji]; d=VF+4*(ji%4)
        return [f'ds_read_b64_tr_b16 {vr(d+2*hf,2)}, v{VV} offset:{tile_of(n)*256+jj*128+hf*32}' for hf in range(2)]
    def mPV(ji):
        n,jj=jobs[ji]
        return f'v_mfma_f32_32x32x16_bf16 {vr(O,16)}, {vr(VF+4*(ji%4),4)}, {vr(Pb(n)+4*jj,4)}, {"0" if ji==0 else vr(O,16)}'
    wo_n=[0]
    def wo_dma(cnt):
        if wo_n[0]>=25: return
        L=lab('NWO')
        a(f's_cmp_eq_u32 s59, 0\ns_cbranch_scc0 {L}')
        for _ in range(cnt):
            if wo_n[0]>=25: break
            i=wo_n[0]%5
            if i==0:
                a(f's_mul_i32 s41, s40, {128*1280}\ns_mul_i32 s42, s40, 20480\ns_add_u32 s42, s42, s35\ns_add_u32 s40, s40, 1\ns_cmp_eq_u32 s40, 5\ns_cselect_b32 s40, 0, s40')
            a(f's_add_u32 m0, s42, {i*4096}')
            a(f'buffer_load_dwordx4 v{4+i}, s[36:39], s41 offen lds')
            wo_n[0]+=1
        a(f'{L}:')
    def v_dma():
        a('s_lshl_b32 s48, s7, 10')
        for dg in range(5):
            a(f's_add_u32 m0, s48, {L_V+dg*VP}')
            a(f'buffer_load_dwordx4 v{VL16}, s[24:27], s61 offen sc1 lds')
            if dg<4: a(f's_add_u32 s61, s61, {PL}')
    vload='buffer_load_dword v14, v15, s[24:27], 0 offen sc1'
    def v_point(cond, what):
        L=lab('NV')
        a(f's_cmp_eq_u32 s63, {cond}\ns_cbranch_scc0 {L}')
        if what=='issue': a(vload)
        else:
            spin(vload,'v_cmp_ne_u32 vcc, 1, v14',True)
            v_dma()
            a('s_mov_b32 s63, 0')
        a(f'{L}:')

    a('ATTN:')
    a(f"""
    s_lshr_b32 s59, s6, 2
    s_lshr_b32 s63, s4, 4
    s_add_u32 s63, s63, 1
    s_mul_i32 s63, s63, s59
    s_sub_u32 s44, 8, s6
    s_cmp_eq_u32 s3, 0
    s_cselect_b32 s44, s44, 0
    s_mov_b32 s45, 0
    s_mov_b32 s46, 0x07060302
    """)
    v_point(1,'issue')
    a('RESTART:')
    for t in rdK(KA,8)+rdK(KB,0): a(t)
    a(f'v_mov_b32 v{Q2+2}, 0\nv_mov_b32 v{Q2+3}, 0')
    a('s_waitcnt lgkmcnt(3)')
    a(mS1(SA,KA)); a(mS2(SA,KA))
    a('s_waitcnt lgkmcnt(0)')
    a(mS1(SB,KB)); a(mS2(SB,KB))
    for t in rdK(KA,7): a(t)
    wo_dma(OPT.wo0 or 4)
    a('s_cmp_eq_u32 s44, 0\ns_cbranch_scc1 T0OK\ns_nop 11')
    for r in range(16): a(f'v_mov_b32 v{SB+r}, 0xff800000')
    a('T0OK:\ns_nop 5')
    for r in range(16): a(f'v_cndmask_b32 v{SA+r}, v{SB+r}, v{SA+r}, s[{MS+2*r}:{MS+2*r+1}]')
    a(f'v_max3_f32 v{MX}, v{SA}, v{SA+1}, v{SA+2}')
    a(f'v_max3_f32 v{MX+1}, v{SA+3}, v{SA+4}, v{SA+5}')
    for x in range(5):
        a(f'v_max3_f32 v{MX+(x&1)}, v{MX+(x&1)}, v{SA+6+2*x}, v{SA+7+2*x}')
    a(f'v_max_f32 v{MX}, v{MX}, v{MX+1}')
    a(f"""
    s_mov_b32 s47, {fh(SHIFT_C)}
    s_or_b32 s48, s44, s45
    s_cbranch_scc0 HAVEMAX
    s_cmp_eq_u32 s45, 0
    s_cselect_b32 s47, s47, 0
    s_cselect_b32 s48, 7, 1
    s_max_u32 s48, s48, s44
    s_mov_b32 s49, 7
    v_add_u32 v{MX+2}, {7*256}, v{VK1}
    v_add_u32 v{MX+3}, {7*256}, v{VK2}
    PASSA:
    s_cmp_lt_u32 s49, s48
    s_cbranch_scc1 HAVEMAX
    ds_read_b64 {vr(KB,2)}, v{MX+2}
    ds_read_b64 {vr(KB+2,2)}, v{MX+2} offset:4096
    ds_read_b64 {vr(KB+4,2)}, v{MX+3}
    v_subrev_u32 v{MX+2}, 256, v{MX+2}
    v_subrev_u32 v{MX+3}, 256, v{MX+3}
    s_sub_u32 s49, s49, 1
    s_waitcnt lgkmcnt(0)
    """)
    a(mS1(SB,KB)); a(mS2(SB,KB))
    for x in range(8): a(f'v_max3_f32 v{MX}, v{MX}, v{SB+2*x}, v{SB+1+2*x}')
    a('s_branch PASSA')
    a('HAVEMAX:')
    a(f"""
    v_mov_b32 v{MX+1}, v{MX}
    s_nop 1
    v_permlane32_swap_b32 v{MX}, v{MX+1}
    v_max_f32 v{MX}, v{MX}, v{MX+1}
    v_sub_f32 v{MX}, -v{MX}, s47
    v_and_b32 v{MX+2}, 0xffff0000, v{MX}
    v_sub_f32 v{MX+2}, v{MX}, v{MX+2}
    v_perm_b32 v{Q2+2}, v{MX+2}, v{MX}, s46
    v_and_b32 v{MX+3}, 0xffff0000, v{MX+2}
    v_sub_f32 v{MX+2}, v{MX+2}, v{MX+3}
    v_lshrrev_b32 v{Q2+3}, 16, v{MX+2}
    s_waitcnt lgkmcnt(0)
    """)
    a(mS1(SB,KA))
    for x in range(8): a(f'v_pk_add_f32 {vr(SA+2*x,2)}, {vr(SA+2*x,2)}, {vr(MX,2)} op_sel_hi:[1,0]')
    a(mS2(SB,KA))
    for t in rdK(KA,6): a(t)
    P8=Pb('M8'); P0=Pb('M0')
    for r in range(16): a(f'v_exp_f32 v{SA+r}, v{SA+r}')
    for x in range(8): a(f'v_cvt_pk_bf16_f32 v{P0+x}, v{SA+2*x}, v{SA+2*x+1}')
    for x in range(8): a(f'v_and_b32 v{P8+x}, v{P0+x}, v{MK+x}')
    for x in range(8): a(f'v_xor_b32 v{P0+x}, v{P0+x}, v{P8+x}')
    v_point(1,'check')
    v_point(2,'issue')
    stamp(7)
    post=[t for t in range(7,0,-1)][sg:]
    sched={}; nj=0
    for idx,t in enumerate(post):
        avail=2*(2+7-t)
        want=min(avail, -(-(16*(idx+1))//len(post)))
        sched[t]=list(range(nj,want)); nj=want
    tail=list(range(nj,18))
    def bv_block():
        L=lab('NBV'); L2=lab('NFG')
        a(f"""
        s_cmp_eq_u32 s59, 2
        s_cbranch_scc1 {L}
        s_cmp_eq_u32 s59, 0
        s_cbranch_scc1 {L2}
        s_waitcnt vmcnt(0)
        {L2}:
        s_barrier
        s_cmp_eq_u32 s6, 4
        s_cbranch_scc0 {L}
        s_mul_i32 s48, s3, {32*384}
        s_lshl_b32 s49, s4, 2
        s_add_u32 s48, s48, s49
        s_add_u32 s48, s48, {WS_F+8*384+256}
        v_mov_b32 v14, 1
        v_mov_b32 v15, 0
        s_mov_b64 exec, 1
        buffer_store_dword v14, v15, s[24:27], s48 offen sc1
        s_mov_b64 exec, -1
        {L}:
        """)
        stamp(8)
        for ji in range(4):
            for z in rdV(ji): a(z)
    def step(t, zero):
        Sc = SB if (t&1) else SA
        Sn = SA if (t&1) else SB
        P=Pb(t)
        js=sched.get(t,[])
        if zero:
            valu=[f'v_mov_b32 v{P+x}, 0' for x in range(8)]
            sm=[]
        else:
            valu=[]
            for hq in range(2):
                valu+=[f'v_exp_f32 v{Sc+r}, v{Sc+r}' for r in range(8*hq,8*hq+8)]
                valu+=[f'v_cvt_pk_bf16_f32 v{P+x}, v{Sc+2*x}, v{Sc+2*x+1}' for x in range(4*hq,4*hq+4)]
            sm=[[mS1(Sn,KA)],[mS2(Sn,KA)]+(rdK(KA,t-2) if t>2 else [])] if t>1 else []
        items=list(sm)
        for ji in js:
            it=[]
            it.append(mPV(ji))
            if ji+4<18: it+=rdV(ji+4)
            items.append(it)
        a('s_waitcnt lgkmcnt(0)')
        n=len(items); nv=len(valu); pos=0
        njob=0
        for q,it in enumerate(items):
            if q>=len(sm):
                if njob>=4:
                    younger=sum(2 for z in range(js[njob]-3, js[njob]) if z+4<18)
                    a(f's_waitcnt lgkmcnt({younger})')
                njob+=1
            for z in it: a(z)
            upto=(nv*(q+1))//n
            for z in valu[pos:upto]: a(z)
            pos=upto
        for z in valu[pos:]: a(z)
    def chain(zero):
        sfx='Z' if zero else 'N'
        for t in range(7,0,-1):
            a(f'STEP{t}{sfx}:')
            if not zero: a(f's_cmp_gt_u32 s44, {t}\ns_cbranch_scc1 STEP{t}Z')
            if post and t==post[0]: bv_block()
            step(t,zero)
            wo_dma(3)
            if t==(OPT.vchk or 7): v_point(2,'check')
        if not post: bv_block()
    w0=wo_n[0]
    chain(False)
    assert wo_n[0]==25
    a('TAIL:')
    for q,ji in enumerate(tail):
        younger=sum(2 for z in range(ji-3,ji) if z+4<18 and z>=0) if ji>=4 else 2*(3-ji)+sum(2 for z in range(0,ji))
        a(f's_waitcnt lgkmcnt({min(younger,6)})')
        a(mPV(ji))
        if ji+4<18:
            for z in rdV(ji+4): a(z)
    a(f's_mov_b32 s47, {fh(2.0**120)}')
    a(f'v_rcp_f32 v{MX}, v{O+12}')
    a(f'v_maximum3_f32 v{MX+2}, |v{O}|, |v{O+1}|, |v{O+2}|')
    for x in range(5): a(f'v_maximum3_f32 v{MX+2}, v{MX+2}, |v{O+3+2*x}|, |v{O+4+2*x}|')
    a(f"""
    v_cmp_ngt_f32 vcc, s47, v{MX+2}
    s_cmp_lg_u32 s45, 0
    s_cbranch_scc1 FIN
    s_cbranch_vccz FIN
    s_mov_b32 s45, 1
    s_mov_b32 s59, 2
    s_branch RESTART
    """)
    wo_n[0]=w0
    chain(True)
    a('s_branch TAIL')
    a('FIN:')
    P=PB
    for x in range(6): a(f'v_pk_mul_f32 {vr(O+2*x,2)}, {vr(O+2*x,2)}, {vr(MX,2)} op_sel_hi:[1,0]')
    for x in range(6): a(f'v_cvt_pk_bf16_f32 v{P+x}, v{O+2*x}, v{O+2*x+1}')
    a(f"""
    s_lshl_b32 s48, s3, 5
    s_add_u32 s48, s48, s6
    s_mul_i32 s48, s48, 384
    s_lshl_b32 s49, s4, 2
    s_add_u32 s48, s48, s49
    s_add_u32 s48, s48, {WS_F+256}
    v_mov_b32 v14, 1
    v_mov_b32 v15, 0
    s_cmp_eq_u32 s32, 0
    s_cbranch_scc1 O_SC1
    """)
    for mod,nm in (('','O_PLAIN'),(' sc1','O_SC1')):
        a(f"""
        {nm}:
        buffer_store_dwordx4 {vr(P,4)}, v{VO1}, s[24:27], 0 offen{mod}
        buffer_store_dwordx2 {vr(P+4,2)}, v{VO2}, s[24:27], 0 offen{mod}
        """)
        stamp(9)
        a(f"""
        s_waitcnt vmcnt(0)
        s_mov_b64 exec, 1
        buffer_store_dword v14, v15, s[24:27], s48 offen{mod}
        """)
        if mod=='': a('s_branch O_DONE')
    a(f"""
    O_DONE:
    s_cmp_lt_u32 s6, 4
    s_cbranch_scc0 OUTPROJ
    v_mov_b32 v15, {L_SYNC}
    ds_add_u32 v15, v14
    s_mov_b64 exec, -1
    """)

def gen_a2():
    GF=16; WF=80; AC=144
    a(f"""
    s_and_b32 s33, s4, 3
    s_mul_i32 s33, s33, 3
    s_add_u32 s33, s33, s7
    s_cmp_eq_u32 s7, 3
    s_cselect_b32 s33, 11, s33
    s_cmp_eq_u32 s33, 11
    s_cbranch_scc1 A2_END
    v_lshrrev_b32 v4, 3, v0
    s_movk_i32 s34, {32*384}
    v_mul_u32_u24 v4, s34, v4
    v_and_b32 v5, 7, v0
    v_lshl_add_u32 v4, v5, 4, v4
    v_add_u32 v4, {WS_F+8*384+256}, v4
    """)
    spin('buffer_load_dwordx4 v[8:11], v4, s[24:27], 0 offen sc1', 'v_and_b32 v8, v8, v9\nv_and_b32 v10, v10, v11\nv_and_b32 v8, v8, v10\nv_cmp_ne_u32 vcc, 1, v8')
    stamp(10)
    a(f"""
    s_lshr_b32 s34, s4, 4
    s_lshl_b32 s34, s34, 3
    s_add_u32 s34, s34, s3
    s_lshl_b32 s35, s6, 8
    v_subrev_u32 v4, s35, v{VK2}
    v_subrev_u32 v4, 16384, v4
    v_lshrrev_b32 v4, 1, v4
    v_lshrrev_b32 v2, 5, v0
    s_movk_i32 s35, {4*GP}
    v_mad_u32_u24 v4, v2, s35, v4
    s_mul_i32 s35, s34, {128*GP}
    s_lshl_b32 s40, s33, 7
    s_add_u32 s35, s35, s40
    s_add_u32 s35, s35, {WS_G}
    s_add_u32 s40, s35, {2*GP}
    """)
    def gl(ks):
        for x in range(4):
            a(f'buffer_load_dword v{GF+4*ks+x}, v4, s[24:27], s{35 if x<2 else 40} offen offset:{(x&1)*GP} sc1')
        if ks<15: a(f's_add_u32 s35, s35, {8*GP}\ns_add_u32 s40, s40, {8*GP}')
    for ks in range(15): gl(ks)
    for ks in range(8): a(f'ds_read_b128 {vr(WF+4*ks,4)}, v{VL16} offset:{L_W2+ks*1024}')
    a(f"""
    s_bfe_u32 s41, s4, 0x20002
    s_lshl_b32 s41, s41, 9
    s_add_u32 s41, s41, s34
    v_and_b32 v5, 15, v0
    v_lshl_add_u32 v6, v5, 4, s41
    v_and_b32 v5, 31, v0
    v_lshl_add_u32 v5, v5, 4, s41
    s_movk_i32 s41, 2560
    v_mul_u32_u24 v5, s41, v5
    v_bfe_u32 v7, v0, 4, 1
    v_lshlrev_b32 v7, 5, v7
    v_lshl_add_u32 v7, v2, 4, v7
    s_lshl_b32 s42, s33, 6
    v_add_u32 v7, s42, v7
    v_mad_u32_u24 v8, v6, s41, v7
    v_add_u32 v9, {256*2560}, v8
    v_sub_u32 v7, {1280-16}, v7
    v_sub_u32 v10, 2048, v6
    v_and_b32 v10, 2047, v10
    v_mad_u32_u24 v10, v10, s41, v7
    v_sub_u32 v11, {2048-256}, v6
    v_mad_u32_u24 v11, v11, s41, v7
    s_waitcnt vmcnt(56)
    """)
    gl(15)
    for ks in range(16):
        if ks==0: a('s_waitcnt lgkmcnt(0)')
        if ks==8: a('s_waitcnt lgkmcnt(0)')
        a(f's_waitcnt vmcnt({4*(15-ks)})')
        a(f'v_mfma_f32_32x32x16_bf16 {vr(AC,16)}, {vr(GF+4*ks,4)}, {vr(WF+4*ks,4)}, {"0" if ks==0 else vr(AC,16)}')
        if ks<8: a(f'ds_read_b128 {vr(WF+4*(ks+8),4)}, v{VL16} offset:{L_W2+(ks+8)*1024}')
    stamp(11)
    a('s_cmp_eq_u32 s33, 10\ns_cbranch_scc1 A2_COL0')
    for x in range(8): a(f'v_cvt_pk_bf16_f32 v{16+x}, v{AC+2*x}, v{AC+2*x+1}')
    for jj in range(2):
        for x in range(4): a(f'v_cvt_pk_bf16_f32 v{24+4*jj+x}, v{AC+8*jj+7-2*x}, v{AC+8*jj+6-2*x}')
    for x in range(4): a(f'v_permlane16_swap_b32 v{16+x}, v{20+x}')
    for x in range(4): a(f'v_permlane16_swap_b32 v{24+x}, v{28+x}')
    a(f"""
    buffer_store_dwordx4 v[24:27], v10, s[28:31], 0 offen
    buffer_store_dwordx4 v[28:31], v11, s[28:31], 0 offen
    s_cmp_eq_u32 s33, 9
    s_cbranch_scc0 A2_LAST
    s_mov_b32 exec_lo, 0
    s_mov_b32 exec_hi, 0xffff0000
    buffer_store_dwordx3 v[16:18], v8, s[28:31], 0 offen offset:2
    buffer_store_short v19, v8, s[28:31], 0 offen offset:14
    buffer_store_dwordx3 v[20:22], v9, s[28:31], 0 offen offset:2
    buffer_store_short v23, v9, s[28:31], 0 offen offset:14
    s_mov_b32 exec_lo, -1
    s_mov_b32 exec_hi, 0xffff
    A2_LAST:
    buffer_store_dwordx4 v[16:19], v8, s[28:31], 0 offen offset:2
    buffer_store_dwordx4 v[20:23], v9, s[28:31], 0 offen offset:2
    s_branch A2_END
    A2_COL0:
    s_nop 10
    v_cvt_pk_bf16_f32 v16, v{AC}, v{AC}
    s_mov_b32 exec_hi, 0
    buffer_store_short v16, v5, s[28:31], 0 offen
    A2_END:
    """)
    finish()

def gen_outproj():
    OF=16; NB=4; WB=[96+20*i for i in range(NB)]; AC=176
    a('OUTPROJ:')
    a(f"""
    s_mov_b64 exec, -1
    s_and_b32 s33, s4, 3
    s_lshr_b32 s34, s4, 2
    s_lshl_b32 s35, s33, 1
    s_lshr_b32 s36, s7, 1
    s_add_u32 s35, s35, s36
    s_lshl_b32 s36, s3, 5
    s_add_u32 s36, s36, s35
    s_mul_i32 s36, s36, 384
    s_add_u32 s36, s36, {WS_F+256}
    v_and_b32 v1, 31, v0
    v_lshl_add_u32 v196, v1, 2, s36
    buffer_load_dword v197, v196, s[24:27], 0 offen sc1
    v_and_b32 v1, 15, v0
    v_lshrrev_b32 v2, 4, v0
    v_and_b32 v3, 1, v2
    v_lshrrev_b32 v4, 1, v2
    s_and_b32 s37, s7, 1
    v_mul_u32_u24 v5, 5, v4
    v_lshl_add_u32 v5, v3, 1, v5
    s_movk_i32 s38, {PL}
    v_lshlrev_b32 v6, 4, v1
    v_mad_u32_u24 v8, v5, s38, v6
    v_lshl_add_u32 v6, v2, 1, v3
    v_xor_b32 v14, 1, v6
    s_mov_b32 s38, {5*PL}
    v_lshlrev_b32 v7, 3, v1
    v_mad_u32_u24 v9, v6, s38, v7
    v_mad_u32_u24 v10, v14, s38, v7
    s_lshl_b32 s40, s3, 11
    s_lshl_b32 s41, s35, 8
    s_add_u32 s40, s40, s41
    s_lshl_b32 s41, s37, 7
    s_add_u32 s41, s41, s40
    s_add_u32 s41, s41, {4*PL}
    s_mul_i32 s42, s37, {PL}
    s_add_u32 s40, s40, s42
    v_lshrrev_b32 v7, 2, v1
    v_and_b32 v15, 3, v1
    v_lshlrev_b32 v15, 3, v15
    s_movk_i32 s38, 160
    v_mad_u32_u24 v15, v7, s38, v15
    v_add_u32 v15, {L_BIG}, v15
    v_mul_u32_u24 v11, 20, v4
    v_mad_u32_u24 v12, v3, 4, v11
    v_add_u32 v12, 4, v12
    v_mad_u32_u24 v11, v3, 12, v11
    v_mad_u32_u24 v11, v11, s38, v15
    v_mad_u32_u24 v12, v12, s38, v15
    s_movk_i32 s38, 3200
    v_mad_u32_u24 v13, v6, s38, v15
    v_mad_u32_u24 v14, v14, s38, v15
    s_lshl_b32 s42, s3, 8
    s_lshl_b32 s43, s33, 6
    s_add_u32 s42, s42, s43
    s_lshl_b32 s43, s7, 4
    s_add_u32 s42, s42, s43
    v_add_u32 v5, s42, v1
    s_movk_i32 s38, 2560
    v_mul_u32_u24 v5, s38, v5
    v_lshl_add_u32 v7, v2, 3, v5
    v_lshl_add_u32 v5, v3, 5, v5
    v_lshl_add_u32 v5, v4, 4, v5
    s_mul_i32 s42, s34, 160
    s_add_u32 s42, s42, 1280
    v_mov_b32 v198, {L_SYNC}
    s_mov_b32 s50, {SPIN}
    WO_WAIT:
    ds_read_b32 v199, v198
    s_sub_u32 s50, s50, 1
    s_waitcnt lgkmcnt(0)
    v_cmp_ne_u32 vcc, 4, v199
    s_cbranch_scc1 WO_OK
    s_cbranch_vccnz WO_WAIT
    WO_OK:
    """)
    steps=[]
    for P_ in range(4): steps += [('F',4*P_+x) for x in range(4)] + [('P',P_)]
    def oload(si):
        kind,n=steps[si]; d=OF+4*si
        if kind=='F':
            return [f'buffer_load_dwordx4 {vr(d,4)}, v8, s[24:27], s40 offen sc1', f's_add_u32 s40, s40, {10*PL}'], 1
        return [f'buffer_load_dwordx2 {vr(d,2)}, v9, s[24:27], s41 offen sc1', f'buffer_load_dwordx2 {vr(d+2,2)}, v10, s[24:27], s41 offen sc1', f's_add_u32 s41, s41, {40*PL}'], 2
    cnt=[oload(i)[1] for i in range(20)]
    def wreads(si):
        kind,n=steps[si]; st=si%NB; L=[]
        if kind=='F': base=(n%8)*6400; r0,r1=11,12
        else: base=(n%2)*25600+2560; r0,r1=13,14
        for j in range(5):
            L.append(f'ds_read_b64_tr_b16 {vr(WB[st]+4*j,2)}, v{r0} offset:{base+32*j}')
            L.append(f'ds_read_b64_tr_b16 {vr(WB[st]+4*j+2,2)}, v{r1} offset:{base+32*j}')
        return L
    D=NB-1
    for si in range(D):
        for t in wreads(si): a(t)
    spin('buffer_load_dword v197, v196, s[24:27], 0 offen sc1', 'v_cmp_ne_u32 vcc, 1, v197', True)
    stamp(10)
    PRE=OPT.opre or 10
    for si in range(PRE):
        for t in oload(si)[0]: a(t)
    nissued=PRE
    for si in range(20):
        fill=[]
        if si+D<20:
            if si+D==10:
                for r in (11,12,13,14): a(f'v_add_u32 v{r}, 51200, v{r}')
            fill=wreads(si+D)
        extra=[]
        outstanding=sum(cnt[si+1:nissued])
        if nissued<20:
            extra=oload(nissued)[0]; nissued+=1
        lg = min(10, 10*max(0,min(D-1, 19-si)))
        a(f's_waitcnt vmcnt({outstanding}) lgkmcnt({lg})')
        m=[f'v_mfma_f32_16x16x32_bf16 {vr(AC+4*j,4)}, {vr(WB[si%NB]+4*j,4)}, {vr(OF+4*si,4)}, {"0" if si==0 else vr(AC+4*j,4)}' for j in range(5)]
        for t in interleave(m, fill, 0, 2): a(t)
        for t in extra: a(t)
    stamp(11)
    for j in range(5):
        a(f'v_cvt_pk_bf16_f32 v{16+2*j}, v{AC+4*j}, v{AC+4*j+1}\nv_cvt_pk_bf16_f32 v{17+2*j}, v{AC+4*j+2}, v{AC+4*j+3}')
    for p in range(2):
        a(f'v_permlane16_swap_b32 v{16+4*p}, v{18+4*p}\nv_permlane16_swap_b32 v{17+4*p}, v{19+4*p}')
    a("""
    buffer_store_dwordx4 v[16:19], v5, s[28:31], s42 offen
    buffer_store_dwordx4 v[20:23], v5, s[28:31], s42 offen offset:64
    buffer_store_dwordx2 v[24:25], v7, s[28:31], s42 offen offset:128
    """)
    finish()

HDR = open('concat_heads__spectral_fnet__sliding_block__prompt.s.ref').read().split('; Override launch')[0]

def build():
    gen_entry()
    gen_L()
    gen_C()
    gen_attn()
    gen_a2()
    gen_outproj()
    a('END:\ns_endpgm')
    launch = f'; @launch grid=(256,1,1) block=(512,1,1) lds={LDS_BYTES}'
    if OPT.aslist: launch = f'; @launch kernel={KN} grid=(256,1,1) block=(512,1,1) lds={LDS_BYTES}'
    return HDR + launch + '\n.amdgcn_target "amdgcn-amd-amdhsa--gfx950"\n.text\n' + a.text() + f""".section .rodata,"a"
.p2align 6
.amdhsa_kernel {KN}
  .amdhsa_next_free_vgpr 256
  .amdhsa_next_free_sgpr 100
  .amdhsa_accum_offset 256
  .amdhsa_group_segment_fixed_size 0
  .amdhsa_kernarg_size 88
  .amdhsa_user_sgpr_count 2
  .amdhsa_user_sgpr_kernarg_segment_ptr 1
  .amdhsa_system_sgpr_workgroup_id_x 1
.end_amdhsa_kernel
"""

if __name__=='__main__':
    out=sys.argv[1]
    for o in sys.argv[2:]:
        if '=' in o: k,v=o.split('='); setattr(OPT,k,int(v))
        else: setattr(OPT,o,True)
    open(out,'w').write(build())
```

```python
import sys, os
sys.path.insert(0,'mb')
from mbl import *
def steps(n, sites):
    WF=[64,80]; A=16; L=[]
    for k in range(n):
        st=k&1
        for i in range(8):
            if i%2==0: L.append('s_waitcnt lgkmcnt(6)')
            L.append(f'v_mfma_f32_16x16x32_bf16 v[{A+4*i}:{A+3+4*i}], v[{WF[st]+4*(i//2)}:{WF[st]+3+4*(i//2)}], v[{100+4*(i&1)}:{103+4*(i&1)}], v[{A+4*i}:{A+3+4*i}]')
            L.append(f'ds_read_b64_tr_b16 v[{WF[1-st]+2*i}:{WF[1-st]+1+2*i}], v{4+i//2} offset:{(k%4)*4096+(i&1)*512}')
            L+=sites.get(8*k+i,[])
    return '\n'.join(L)
pre='''
v_and_b32 v1, 15, v0
v_bfe_u32 v2, v0, 4, 2
v_lshrrev_b32 v3, 2, v1
v_lshl_add_u32 v3, v2, 3, v3
v_lshlrev_b32 v4, 7, v3
v_bfe_u32 v7, v1, 3, 1
v_lshl_or_b32 v4, v7, 5, v4
v_and_b32 v7, 1, v2
v_lshl_or_b32 v4, v7, 6, v4
v_and_b32 v7, 3, v1
v_lshl_or_b32 v4, v7, 3, v4
v_xor_b32 v5, 32, v4
v_xor_b32 v6, 64, v4
v_xor_b32 v7, 0x60, v4
s_lshl_b32 s30, s2, 16
s_add_u32 s30, s30, 0x4000000
v_lshl_add_u32 v10, v0, 4, s30
v_lshrrev_b32 v11, 6, v0
s_nop 1
v_readfirstlane_b32 s31, v11
'''
def body(op, gap, stag, n=4):
    out='s_barrier\n'
    for u in range(4):
        sites={3+u*stag+z*gap:[op,'v_xor_b32 v10, 0x1000, v10' if z%2==0 else 'v_xor_b32 v10, 0x3000, v10'] for z in range(n)}
        out+=f's_cmp_eq_u32 s31, {u}\ns_cbranch_scc0 N{u}\n'+steps(20,sites)+f'\ns_branch E\nN{u}:\n'
    return out+'E:\ns_waitcnt vmcnt(0)\n'
T=[]
OPS={'none':'s_nop 0','st':'global_store_dwordx4 v10, v[112:115], s[4:5]','sc1':'global_store_dwordx4 v10, v[112:115], s[4:5] sc1','ld':'global_load_dwordx4 v[112:115], v10, s[4:5] sc1','dsw':'ds_write_b128 v12, v[112:115] offset:32768'}
for nm in ['none','st','sc1','ld','dsw']:
    for gap,stag in [(2,0),(8,0),(8,2),(16,0),(16,4),(24,6)]:
        if nm=='none' and (gap,stag)!=(8,0): continue
        T.append((f'{nm}_gap{gap}_stag{stag}', dict(body=body(OPS[nm],gap,stag), waves=4, iters=20, pre=pre+'v_lshlrev_b32 v12, 4, v0\n', lds=100000)))
if os.path.exists('/dev/kfd'): run_all(T)
else: check_all(T)
```
